```python
import torch

def _softmax(x, axis=-1):
    return torch.softmax(x, dim=axis)
def _gelu(x):
    return torch.nn.functional.gelu(x, approximate="tanh")
def _silu(x):
    return torch.nn.functional.silu(x)
def _sigmoid(x):
    return torch.sigmoid(x)
def _layernorm(x, axis=-1, eps=1e-5):
    m = x.mean(dim=axis, keepdim=True)
    v = x.var(dim=axis, keepdim=True, unbiased=False)
    return (x - m) / torch.sqrt(v + eps)
def _scatter_add(tgt, idx, src, axis=0):
    return tgt.clone().index_add_(axis, idx, src)
def _segment_sum(src, seg, n):
    out = torch.zeros((n,) + src.shape[1:], dtype=src.dtype)
    return out.index_add_(0, seg, src)
def _pad(x, pw):
    flat = tuple(v for pair in reversed(pw) for v in pair)
    return torch.nn.functional.pad(x, flat)

kernel_name = 'gated_mix__grouped_kv_mqa__mha_block__prompt'

def setup_inputs():

    _w = (lambda a: (lambda t: t.to(torch.bfloat16) if t.is_floating_point() else t)(torch.as_tensor(a)))
    def _A_setup():
        B, S, D, H = 1, 2048, 640, 32
        Dh = D // H
        return {
            "x": _w((lambda *s: torch.randn(*s, dtype=torch.bfloat16) * 0.1)(B, S, D)),
            "wq": _w((lambda *s: torch.randn(*s, dtype=torch.bfloat16) * 0.4)(D, H * Dh)),
            "wk": _w((lambda *s: torch.randn(*s, dtype=torch.bfloat16) * 0.4)(D, Dh)),
            "wv": _w((lambda *s: torch.randn(*s, dtype=torch.bfloat16) * 0.4)(D, Dh)),
            "wo": _w((lambda *s: torch.randn(*s, dtype=torch.bfloat16) * 0.4)(H * Dh, D)),
        }
    _A_in = _A_setup()

    def _B_setup():
        B, S, D, H = 1, 2048, 640, 32
        return {
            "x": _w((lambda *s: torch.randn(*s, dtype=torch.bfloat16) * 0.1)(B, S, D)),
            "wqkv": _w((lambda *s: torch.randn(*s, dtype=torch.bfloat16) * 0.4)(D, 3 * D)),
            "wo": _w((lambda *s: torch.randn(*s, dtype=torch.bfloat16) * 0.2)(D, D)),
        }
    _B_in = _B_setup()

    return {
        "A_x": _A_in["x"],
        "A_wq": _A_in["wq"],
        "A_wk": _A_in["wk"],
        "A_wv": _A_in["wv"],
        "A_wo": _A_in["wo"],
        "B_x": _B_in["x"],
        "B_wqkv": _B_in["wqkv"],
        "B_wo": _B_in["wo"],
        "gate_w": _w((lambda *s: torch.randn(*s, dtype=torch.bfloat16) * 0.1)(640) * 16.0),
    }

def reference(A_x, A_wq, A_wk, A_wv, A_wo, B_x, B_wqkv, B_wo, gate_w):
    def _A_ref(x, wq, wk, wv, wo):
        B, S, D = x.shape
        H = 32
        Dh = D // H
        q = (lambda x, *d: x.permute(*d))((x @ wq).reshape(B, S, H, Dh), 0, 2, 1, 3)
        k = x @ wk
        v = x @ wv
        scores = torch.einsum("bhqd,bkd->bhqk", q, k) * (Dh ** -0.5)
        p = _softmax(scores, axis=-1)
        o = torch.einsum("bhqk,bkd->bhqd", p, v)
        return (lambda x, *d: x.permute(*d))(o, 0, 2, 1, 3).reshape(B, S, H * Dh) @ wo

    def _B_ref(x, wqkv, wo):
        B, S, D = x.shape
        H = 32
        Dh = D // H
        qkv = (lambda x, *d: x.permute(*d))((x @ wqkv).reshape(B, S, 3, H, Dh), 2, 0, 3, 1, 4)
        q, k, v = qkv[0], qkv[1], qkv[2]
        scores = torch.einsum("bhqd,bhkd->bhqk", q, k) * (Dh ** -0.5)
        p = _softmax(scores, axis=-1)
        o = torch.einsum("bhqk,bhkd->bhqd", p, v)
        return (lambda x, *d: x.permute(*d))(o, 0, 2, 1, 3).reshape(B, S, D) @ wo

    x = A_x
    g = _sigmoid((x * gate_w).sum(-1, keepdims=True))
    a = _A_ref(x, A_wq, A_wk, A_wv, A_wo)
    b = _B_ref(x, B_wqkv, B_wo)
    return g * a + (1 - g) * b
```

```python
from gen_common import *

def gen_attn(NQ=1, prof=False, var='', prio=1, zrows=1):
    NW=16//NQ
    NSTEP=160//NW
    a=A()
    S=[16,32]
    O=[48+16*i for i in range(NQ)]
    p=48+16*NQ
    Qm=[p+4*i for i in range(NQ)]; p+=4*NQ
    Km=[p,p+4]; p+=8
    Kr=[p,p+4]; p+=8
    V=[p,p+8]; p+=16
    Qr=[p+2*i for i in range(NQ)]; p+=2*NQ
    WT=p; p+=8
    vWA=p; vWB=p+1; p+=2
    NV=p
    vIDX=1; vKm=2; vKr=3; vV=4; vL16=5; vG=[6,7]; vT=8; vT2=9; vM=[10,11]; vLane=12; vR8=13
    sHQ=12; sQB=13; sKV=14; sW=15; sT=16; sT2=17; sCH=18; sSYNC=19; sRETRY=20; sQT=22
    MV=24; MLO=26; MHI=28; sM0=32; sSRC=33
    def steps_needed(nchunks): return -(-(20*nchunks)//NW)
    a("s_cmp_ge_u32 s2, 256")
    a("s_cbranch_scc1 Lattn_end")
    a("s_load_dwordx2 s[4:5], s[0:1], 88")
    a("s_load_dwordx2 s[6:7], s[0:1], 32")
    a("s_load_dwordx2 s[38:39], s[0:1], 56")
    if prof:
        a("s_memtime s[40:41]"); a("s_memrealtime s[50:51]")
    a(f"v_and_b32 v{vLane}, 63, v0")
    a(f"v_lshrrev_b32 v{vT}, 6, v0")
    a(f"v_lshlrev_b32 v{vL16}, 4, v{vLane}")
    a(f"v_readfirstlane_b32 s{sW}, v{vT}")
    a("s_and_b32 s16, s2, 7")
    a("s_lshr_b32 s17, s2, 3")
    a(f"s_and_b32 s{sQB}, s17, 3")
    a("s_lshr_b32 s17, s17, 2")
    a("s_lshl_b32 s16, s16, 2")
    a("s_and_b32 s23, s17, 3")
    a("s_add_u32 s16, s16, s23")
    a("s_lshr_b32 s17, s17, 2")
    a("s_lshl_b32 s23, s17, 5")
    a(f"s_add_u32 s{sHQ}, s16, s23")
    a("s_cmp_eq_u32 s17, 0")
    a(f"s_cselect_b32 s{sKV}, 32, s16")
    a(f"s_mul_i32 s{sKV}, s{sKV}, {KV_BYTES}")
    a(f"s_add_u32 s{sKV}, s{sKV}, {WS_KV}")
    a(f"s_lshl_b32 s{sM0}, s{sW}, 10")
    a(f"s_add_u32 s{sSRC}, s{sM0}, s{sKV}")
    a(f"s_lshl_b32 s{sQT}, s{sQB}, 4")
    a(f"s_mul_i32 s16, s{sW}, {NQ}")
    a(f"s_add_u32 s{sQT}, s{sQT}, s16")
    a(f"v_and_b32 v{vT}, 31, v{vLane}")
    a(f"v_lshlrev_b32 v{vR8}, 3, v{vT}")
    a(f"v_lshlrev_b32 v{vT2}, 2, v{vT}")
    a(f"s_mov_b32 s10, {WS_END}")
    a("s_mov_b32 s11, 0x00020000")
    a(f"s_mul_i32 s16, s{sHQ}, {QH_BYTES}")
    a(f"s_lshl_b32 s23, s{sQT}, 10")
    a("s_add_u32 s23, s23, s16")
    a(f"s_lshl_b32 s30, s{sQT}, 8")
    a("s_add_u32 s30, s30, s16")
    a("s_add_u32 s30, s30, 65536")
    a("s_lshl_b32 s31, s17, 13")
    a(f"s_lshl_b32 s16, s{sQT}, 7")
    a("s_add_u32 s31, s31, s16")
    a(f"s_add_u32 s31, s31, {WS_G}")
    a(f"s_mov_b32 m0, s{sM0}")
    a("s_waitcnt lgkmcnt(0)")
    a("s_mov_b32 s8, s4")
    a("s_mov_b32 s9, s5")
    def dma(s):
        a(f"buffer_load_dwordx4 v{vL16}, s[8:11], s{sSRC} offen lds")
        if s<NSTEP-1:
            a(f"s_add_u32 s{sM0}, s{sM0}, {NW*1024}")
            a(f"s_add_u32 s{sSRC}, s{sSRC}, {NW*1024}")
            a(f"s_mov_b32 m0, s{sM0}")
            a("s_nop 0")
    N1=steps_needed(1)
    dma(0)
    for i in range(NQ):
        a(f"buffer_load_dwordx4 {vr(Qm[i],4)}, v{vL16}, s[8:11], s23 offen offset:{1024*i}")
    for i in range(NQ):
        a(f"buffer_load_dwordx2 {vr(Qr[i],2)}, v{vR8}, s[8:11], s30 offen offset:{256*i}")
    for s in range(1,N1): dma(s)
    for i in range(NQ):
        a(f"buffer_load_dword v{vG[i]}, v{vT2}, s[8:11], s31 offen offset:{128*i}")
    sF=21
    a(f"s_mul_i32 s{sF}, s2, {NW}")
    a(f"s_add_u32 s{sF}, s{sF}, s{sW}")
    a(f"s_mul_i32 s16, s{sF}, 5243")
    a("s_lshr_b32 s16, s16, 20")
    a("s_mul_i32 s17, s16, 200")
    a(f"s_sub_u32 s17, s{sF}, s17")
    a("s_mul_i32 s23, s17, 205")
    a("s_lshr_b32 s23, s23, 10")
    a("s_mul_i32 s30, s23, 5")
    a("s_sub_u32 s17, s17, s30")
    a("s_cmp_lt_u32 s23, 20")
    a("s_cselect_b32 s36, s6, s38")
    a("s_cselect_b32 s37, s7, s39")
    a("s_cselect_b32 s30, 0, 20")
    a("s_sub_u32 s23, s23, s30")
    a("s_lshl_b32 s23, s23, 2")
    a(f"s_cmp_lt_u32 s{sF}, 1600")
    a(f"s_cselect_b32 s38, {640*1280}, 0")
    a("s_mov_b32 s39, 0x00020000")
    a(f"v_lshrrev_b32 v{vT}, 4, v{vLane}")
    a(f"v_add_u32 v{vT}, s23, v{vT}")
    a(f"v_mul_u32_u24 v{vT2}, 205, v{vT}")
    a(f"v_lshrrev_b32 v{vT2}, 10, v{vT2}")
    a(f"v_mul_u32_u24 v{vWA}, 5, v{vT2}")
    a(f"v_sub_u32 v{vT}, v{vT}, v{vWA}")
    a(f"v_mul_u32_u24 v{vWA}, 40, v{vT2}")
    a(f"v_lshrrev_b32 v{vT2}, 1, v{vT}")
    a(f"v_mul_u32_u24 v{vT2}, 20, v{vT2}")
    a(f"v_and_b32 v{vWB}, 1, v{vT}")
    a(f"v_lshl_add_u32 v{vT2}, v{vWB}, 3, v{vT2}")
    a(f"v_cmp_eq_u32 vcc, 4, v{vT}")
    a(f"v_mov_b32 v{vWB}, {4*1280}")
    a(f"v_mov_b32 v{vT}, {20*1280}")
    a(f"v_cndmask_b32 v{vT2}, v{vT2}, 16, vcc")
    a(f"v_cndmask_b32 v{vWB}, v{vWB}, v{vT}, vcc")
    a(f"v_add_u32 v{vWA}, v{vWA}, v{vT2}")
    a(f"v_mul_u32_u24 v{vWA}, 1280, v{vWA}")
    a(f"v_and_b32 v{vT}, 15, v{vLane}")
    a(f"v_and_b32 v{vT2}, 12, v{vT}")
    a("s_cmp_lt_u32 s17, 4")
    a("s_cselect_b32 s30, -1, 0")
    a(f"v_and_b32 v{vT2}, s30, v{vT2}")
    a(f"v_add_u32 v{vT}, v{vT}, v{vT2}")
    a("s_lshr_b32 s30, s17, 1")
    a("s_lshl_b32 s30, s30, 5")
    a("s_and_b32 s17, s17, 1")
    a("s_lshl_b32 s17, s17, 2")
    a("s_add_u32 s30, s30, s17")
    a("s_mul_i32 s16, s16, 80")
    a("s_add_u32 s30, s30, s16")
    a("s_lshl_b32 s34, s30, 1")
    a(f"v_lshl_add_u32 v{vWA}, v{vT}, 1, v{vWA}")
    a(f"v_add_u32 v{vWB}, v{vWB}, v{vWA}")
    a(f"s_mov_b32 s{MV}, 0x000fffff")
    a(f"s_mov_b32 s{MV+1}, 0x000fffff")
    a(f"s_mov_b32 s{MLO}, -1")
    a(f"s_mov_b32 s{MLO+1}, 0")
    a(f"s_mov_b32 s{MHI}, 0")
    a(f"s_mov_b32 s{MHI+1}, -1")
    a(f"v_mov_b32 v{vIDX}, 0xdddddddd")
    if zrows:
        a(f"v_mov_b32 v{vT2}, 0")
        a("s_mov_b32 s16, 0x01100000")
        a("s_mov_b32 s17, 0x01100000")
        a("s_mov_b64 exec, s[16:17]")
        a(f"v_mov_b32 v{vT2}, 0x3f803f80")
        a("s_mov_b64 exec, -1")
    else:
        a(f"v_mov_b32 v{vT2}, 0x3f803f80")
    for b in range(2):
        for i in range(8): a(f"v_mov_b32 v{V[b]+i}, v{vT2}")
        a(f"v_mov_b32 v{Kr[b]}, 0x3f80"); a(f"v_mov_b32 v{Kr[b]+1}, 0")
        a(f"v_mov_b32 v{Kr[b]+2}, 0x3f80"); a(f"v_mov_b32 v{Kr[b]+3}, 0")
    a(f"s_mov_b32 s{sSYNC}, 2")
    a(f"s_mov_b32 s{sRETRY}, 0")
    a(f"v_lshrrev_b32 v{vT}, 5, v{vLane}")
    a(f"v_mul_u32_u24 v{vT}, 320, v{vT}")
    a(f"v_lshlrev_b32 v{vT2}, 1, v{vR8}")
    a(f"v_add_u32 v14, v{vT}, v{vT2}")
    a(f"v_add_u32 v14, 10240, v14")
    a(f"s_waitcnt vmcnt({NQ})")
    a(f"s_mov_b64 exec, s[{MHI}:{MHI+1}]")
    for i in range(NQ):
        a(f"v_mov_b32 v{Qr[i]}, 0"); a(f"v_mov_b32 v{Qr[i]+1}, 0")
    a("s_mov_b64 exec, -1")
    a("s_barrier")
    if prof: a("s_memtime s[42:43]")
    a.label("Lattn_start")
    a(f"v_mov_b32 v{vKm}, v{vL16}")
    a(f"v_add_u32 v{vKr}, 8192, v{vR8}")
    a(f"v_mov_b32 v{vV}, v14")
    a(f"ds_read_b128 {vr(Km[0],4)}, v{vKm}")
    a(f"ds_read_b128 {vr(Km[1],4)}, v{vKm} offset:1024")
    a(f"s_mov_b64 exec, s[{MLO}:{MLO+1}]")
    a(f"ds_read2_b64 {vr(Kr[0],4)}, v{vKr} offset0:0 offset1:32")
    a(f"s_mov_b64 exec, s[{MV}:{MV+1}]")
    a(f"ds_read_b128 {vr(V[0],4)}, v{vV}")
    a(f"ds_read_b128 {vr(V[0]+4,4)}, v{vV} offset:640")
    a("s_mov_b64 exec, -1")
    a(f"s_cmp_lg_u32 s{sRETRY}, 0")
    a("s_cbranch_scc1 Lattn_havemax")
    a("s_waitcnt lgkmcnt(0)")
    tmp=[[S[0],S[1]]] if NQ==1 else [[S[0],S[1]],[O[0],O[1]]]
    for i in range(NQ):
        for t in range(2):
            a(f"v_mfma_f32_32x32x8_bf16 {vr(tmp[i][t],16)}, {vr(Kr[0]+2*t,2)}, {vr(Qr[i],2)}, 0")
            a(f"v_mfma_f32_32x32x16_bf16 {vr(tmp[i][t],16)}, {vr(Km[t],4)}, {vr(Qm[i],4)}, {vr(tmp[i][t],16)}")
    if NQ==1: a("s_nop 9")
    else: a("s_nop 5")
    for i in range(NQ):
        for t in range(2):
            for r in range(0,16,2):
                if t==0 and r==0: a(f"v_max_f32 v{vM[i]}, v{tmp[i][t]+r}, v{tmp[i][t]+r+1}")
                else: a(f"v_max3_f32 v{vM[i]}, v{tmp[i][t]+r}, v{tmp[i][t]+r+1}, v{vM[i]}")
            if NQ==1 and t==0: a("s_nop 3")
    a.label("Lattn_havemax")
    for i in range(NQ):
        a(f"v_mov_b32 v{vT}, v{vM[i]}")
        a("s_nop 1")
        a(f"v_permlane32_swap_b32 v{vM[i]}, v{vT}")
        a("s_nop 1")
        a(f"v_max_f32 v{vM[i]}, v{vM[i]}, v{vT}")
        a(f"v_xor_b32 v{vM[i]}, 0x80000000, v{vM[i]}")
    a(f"s_mov_b64 exec, s[{MHI}:{MHI+1}]")
    for i in range(NQ):
        a(f"v_lshrrev_b32 v{Qr[i]}, 16, v{vM[i]}")
    a("s_mov_b64 exec, -1")
    a("s_waitcnt lgkmcnt(0)")
    a(f"s_mov_b32 s{sCH}, 0")
    a(f"v_mfma_f32_32x32x8_bf16 {vr(S[0],16)}, {vr(Kr[0],2)}, {vr(Qr[0],2)}, 0")
    a(f"v_mfma_f32_32x32x16_bf16 {vr(S[0],16)}, {vr(Km[0],4)}, {vr(Qm[0],4)}, {vr(S[0],16)}")
    for i in range(NQ):
        for r in range(16): a(f"v_mov_b32 v{O[i]+r}, 0")
    for r in range(8,16): a(f"v_mov_b32 v{S[1]+r}, 0")
    if prof:
        a("s_memtime s[44:45]"); a("s_waitcnt lgkmcnt(0)")
    if prio: a("s_setprio 3")
    KD = 2 if NQ==1 else 1
    st={'next':N1}
    def chunk(kind):
        for t in range(8):
            for sub in range(NQ):
                u=t*NQ+sub
                cur=S[u%2]; nxt=S[(u+1)%2]
                pt,psub=divmod(u-1+8*NQ,NQ)
                nt,nsub=divmod(u+1,NQ)
                def e(i): a(f"v_exp_f32 v{cur+i}, v{cur+i}")
                a.c(f"--- tile {t} sub {sub}")
                e(0); e(1)
                a(f"v_smfmac_f32_32x32x32_bf16 {vr(O[psub],16)}, {vr(V[pt%2]+4,4)}, {vr(nxt+8,8)}, v{vIDX}")
                if sub==NQ-1: a("s_waitcnt lgkmcnt(0)")
                e(2); e(3)
                krb=Kr[(nt>>1)%2]+2*(nt&1)
                a(f"v_mfma_f32_32x32x8_bf16 {vr(nxt,16)}, {vr(krb,2)}, {vr(Qr[nsub],2)}, 0")
                e(4); e(5)
                a(f"v_mfma_f32_32x32x16_bf16 {vr(nxt,16)}, {vr(Km[nt%2],4)}, {vr(Qm[nsub],4)}, {vr(nxt,16)}")
                e(6); e(7); e(8); e(9)
                if sub==0:
                    kt=t+KD
                    if kt==8:
                        if kind==0:
                            a(f"s_waitcnt vmcnt({st['next']-steps_needed(2)})")
                            a("s_barrier")
                        if kind==1:
                            a("s_waitcnt vmcnt(0)")
                            a("s_barrier")
                            for ee in range(8):
                                a(f"buffer_load_ushort v{WT+ee}, v{vWA if ee<4 else vWB}, s[36:39], s34 offen offset:{(ee&3)*1280}")
                        a(f"v_add_u32 v{vKr}, {CHUNK}, v{vKr}")
                    a(f"s_mov_b64 exec, s[{MV}:{MV+1}]")
                    vt=t+1
                    voff = vt*1280 if vt<8 else CHUNK+(vt-8)*1280
                    a(f"ds_read_b128 {vr(V[vt%2],4)}, v{vV} offset:{voff}")
                    a(f"v_smfmac_f32_32x32x32_bf16 {vr(O[sub],16)}, {vr(V[t%2],4)}, {vr(cur,8)}, v{vIDX}")
                    a(f"ds_read_b128 {vr(V[vt%2]+4,4)}, v{vV} offset:{voff+640}")
                    if kt%2==0:
                        a(f"s_mov_b64 exec, s[{MLO}:{MLO+1}]")
                        j=kt%8
                        a(f"ds_read2_b64 {vr(Kr[(kt>>1)%2],4)}, v{vKr} offset0:{32*j} offset1:{32*j+32}")
                    a("s_mov_b64 exec, -1")
                    koff = kt*1024 if kt<8 else CHUNK+(kt-8)*1024
                    a(f"ds_read_b128 {vr(Km[kt%2],4)}, v{vKm} offset:{koff}")
                else:
                    a(f"v_smfmac_f32_32x32x32_bf16 {vr(O[sub],16)}, {vr(V[t%2],4)}, {vr(cur,8)}, v{vIDX}")
                    a("s_nop 0")
                e(10); e(11); e(12)
                if kind==0:
                    nd = 2 if (NSTEP-st['next']) > (8*NQ-u) else 1
                    for _ in range(nd):
                        if st['next']<NSTEP:
                            dma(st['next']); st['next']+=1
                e(13); e(14); e(15)
        a(f"v_add_u32 v{vKm}, {CHUNK}, v{vKm}")
        a(f"v_add_u32 v{vV}, {CHUNK}, v{vV}")
    a(f"s_cmp_lg_u32 s{sRETRY}, 0")
    a("s_cbranch_scc1 Lattn_loop")
    a.label("Lattn_peel")
    chunk(0)
    assert st['next']==NSTEP
    chunk(1)
    a(f"s_mov_b32 s{sCH}, 2")
    a(".p2align 6")
    a.label("Lattn_loop")
    chunk(2)
    a(f"s_add_u32 s{sCH}, s{sCH}, 1")
    if prio:
        a(f"s_cmp_lt_u32 s{sCH}, 5")
        a("s_cbranch_scc1 Lattn_loop")
        a("s_setprio 2")
        a(f"s_cmp_eq_u32 s{sCH}, 5")
        a("s_cbranch_scc1 Lattn_loop")
        a("s_setprio 1")
        a(f"s_cmp_eq_u32 s{sCH}, 6")
        a("s_cbranch_scc1 Lattn_loop")
        a("s_setprio 0")
    a(f"s_cmp_lt_u32 s{sCH}, 8")
    a("s_cbranch_scc1 Lattn_loop")
    a.label("Lattn_loopend")
    lastu=8*NQ-1
    a(f"v_smfmac_f32_32x32x32_bf16 {vr(O[NQ-1],16)}, {vr(V[7%2]+4,4)}, {vr(S[lastu%2]+8,8)}, v{vIDX}")
    a("s_waitcnt lgkmcnt(0)")
    if prof:
        a("s_memtime s[46:47]"); a("s_waitcnt lgkmcnt(0)")
    a(f"s_lshr_b32 s16, s{sHQ}, 1")
    a("s_mul_i32 s16, s16, 2560")
    a(f"s_mul_i32 s17, s{sQT}, 81920")
    a("s_add_u32 s16, s16, s17")
    a(f"s_add_u32 s16, s16, {WS_O}")
    a(f"s_and_b32 s17, s{sHQ}, 1")
    a("s_lshl_b32 s23, s17, 10")
    a("s_add_u32 s23, s23, s16")
    a("s_lshl_b32 s17, s17, 3")
    a("s_add_u32 s16, s16, s17")
    a("s_add_u32 s16, s16, 2048")
    a(f"v_mov_b32 v{vT}, 0x5d800000")
    a("s_mov_b64 s[30:31], -1")
    a("s_nop 3")
    for i in range(NQ):
        a(f"s_mov_b64 exec, s[{MHI}:{MHI+1}]")
        a(f"v_mov_b32 v{O[i]+12}, v{O[i]+8}")
        a("s_mov_b64 exec, -1")
        a(f"v_cmp_lt_f32 vcc, v{O[i]+12}, v{vT}")
        a("s_nop 1")
        a("s_and_b64 s[30:31], s[30:31], vcc")
    a("s_cmp_eq_u64 s[30:31], -1")
    a("s_cbranch_scc0 Lattn_fallback")
    a.label("Lattn_ok")
    for i in range(NQ):
        a(f"v_rcp_f32 v{vT}, v{O[i]+12}")
        a("s_nop 0")
        a(f"v_mul_f32 v{vT}, v{vT}, v{vG[i]}")
        for r in range(12): a(f"v_mul_f32 v{O[i]+r}, v{O[i]+r}, v{vT}")
        for r in range(6): a(f"v_cvt_pk_bf16_f32 v{S[i]+r}, v{O[i]+2*r}, v{O[i]+2*r+1}")
        a(f"buffer_store_dwordx4 {vr(S[i],4)}, v{vL16}, s[8:11], s23 offen")
        a(f"s_mov_b64 exec, s[{MLO}:{MLO+1}]")
        a(f"buffer_store_dwordx2 {vr(S[i]+4,2)}, v{vL16}, s[8:11], s16 offen")
        a("s_mov_b64 exec, -1")
        if i<NQ-1:
            a("s_add_u32 s23, s23, 81920")
            a("s_add_u32 s16, s16, 81920")
    a(f"s_cmp_ge_u32 s{sF}, 1600")
    a("s_cbranch_scc1 Lattn_nowt")
    a(f"s_lshl_b32 s16, s{sF}, 10")
    a(f"s_add_u32 s16, s16, {WS_WT}")
    a(f"s_waitcnt vmcnt({2*NQ})")
    for ee in range(4): a(f"v_lshl_or_b32 v{WT+ee}, v{WT+2*ee+1}, 16, v{WT+2*ee}")
    a(f"buffer_store_dwordx4 {vr(WT,4)}, v{vL16}, s[8:11], s16 offen")
    a.label("Lattn_nowt")
    if prof:
        a("s_waitcnt vmcnt(0)")
        a("s_memtime s[48:49]"); a("s_memrealtime s[52:53]"); a("s_waitcnt lgkmcnt(0)")
        for i,(x,y) in enumerate([(42,40),(44,40),(46,40),(48,40),(52,50)]):
            a(f"s_sub_u32 s{54+i}, s{x}, s{y}")
        for i in range(5): a(f"v_mov_b32 v{16+i}, s{54+i}")
        a("v_mov_b32 v21, s40"); a("v_mov_b32 v22, s50"); a("v_mov_b32 v23, 0")
        a(f"s_lshl_b32 s16, s2, 4"); a(f"s_add_u32 s16, s16, s{sW}"); a("s_lshl_b32 s16, s16, 5")
        a(f"s_add_u32 s16, s16, {WS_END}")
        a(f"s_add_u32 s10, s10, 0x100000")
        a("v_mov_b32 v24, 0")
        a("s_mov_b64 exec, 1")
        a("buffer_store_dwordx4 v[16:19], v24, s[8:11], s16 offen")
        a("buffer_store_dwordx4 v[20:23], v24, s[8:11], s16 offen offset:16")
    a.label("Lattn_end")
    a("s_endpgm")
    a.label("Lattn_fallback")
    a(f"s_cmp_lg_u32 s{sRETRY}, 0")
    a("s_cbranch_scc1 Lattn_ok")
    a(f"s_mov_b32 s{sRETRY}, 1")
    a(f"s_mov_b64 exec, s[{MHI}:{MHI+1}]")
    for i in range(NQ):
        a(f"v_mov_b32 v{Qr[i]}, 0")
    a("s_mov_b64 exec, -1")
    for i in range(NQ): a(f"v_mov_b32 v{vM[i]}, 0xff800000")
    a(f"s_mov_b32 s{sT}, 0")
    a.label("Lattn_mloop")
    a(f"s_lshr_b32 s23, s{sT}, 3")
    a(f"s_mul_i32 s23, s23, {CHUNK}")
    a(f"s_and_b32 s{sT2}, s{sT}, 7")
    a(f"s_lshl_b32 s30, s{sT2}, 10")
    a("s_add_u32 s30, s30, s23")
    a(f"s_lshl_b32 s31, s{sT2}, 8")
    a("s_add_u32 s31, s31, s23")
    a(f"v_add_u32 v{vT}, s30, v{vL16}")
    a(f"v_add_u32 v{vT2}, s31, v{vR8}")
    a(f"ds_read_b128 {vr(Km[0],4)}, v{vT}")
    a(f"s_mov_b64 exec, s[{MLO}:{MLO+1}]")
    a(f"ds_read_b64 {vr(Kr[0],2)}, v{vT2} offset:8192")
    a("s_mov_b64 exec, -1")
    a("s_waitcnt lgkmcnt(0)")
    for i in range(NQ):
        a(f"v_mfma_f32_32x32x8_bf16 {vr(S[i],16)}, {vr(Kr[0],2)}, {vr(Qr[i],2)}, 0")
        a(f"v_mfma_f32_32x32x16_bf16 {vr(S[i],16)}, {vr(Km[0],4)}, {vr(Qm[i],4)}, {vr(S[i],16)}")
    a("s_nop 15")
    for i in range(NQ):
        for r in range(0,16,2):
            a(f"v_max3_f32 v{vM[i]}, v{S[i]+r}, v{S[i]+r+1}, v{vM[i]}")
    a(f"s_add_u32 s{sT}, s{sT}, 1")
    a(f"s_cmp_lt_u32 s{sT}, 64")
    a("s_cbranch_scc1 Lattn_mloop")
    a("s_branch Lattn_start")
    txt=a.text()
    if var:
        head,rest=txt.split("Lattn_peel:",1)
        body,tail=rest.split("Lattn_loopend:",1)
        L=body.split("\n")
        if 'nosm' in var: L=[x for x in L if 'v_smfmac' not in x]
        if 'noqk' in var: L=[x for x in L if 'v_mfma' not in x]
        if 'noexp' in var: L=[x for x in L if 'v_exp' not in x]
        if 'nods' in var: L=[x for x in L if 'ds_read' not in x]
        txt=head+"Lattn_peel:"+"\n".join(L)+"Lattn_loopend:"+tail
        txt=txt.replace("s_cbranch_scc0 Lattn_fallback","s_nop 0",1)
    return txt, NV, 64*NW
```

```python
S_LEN=2048; D=640; H=32; DH=20
WS_Q  = 0
QH_BYTES = 81920
WS_KV = 64*QH_BYTES
KV_BYTES = 163840
WS_G  = WS_KV + 33*KV_BYTES
WS_O  = 0xB00000
WS_WT = WS_O + 64*81920
WS_END = WS_WT + 8*40*5120
CHUNK = 20480

class A:
    def __init__(s): s.l=[]
    def __call__(s,x): s.l.append("  "+x)
    def label(s,x): s.l.append(x+":")
    def c(s,x): s.l.append("  ; "+x)
    def text(s): return "\n".join(s.l)
def vr(a,n): return f"v[{a}:{a+n-1}]"
def sr(a,n): return f"s[{a}:{a+n-1}]"
```

```python
from gen_common import *

def gen_out(prof=False):
    a=A()
    SWS=8; SO=12
    sMB=16; sNB=17; sWv=18; sT=19; sT2=20; sOB=21; sWB=22
    vLane=1; vOo=2; vWo=3; vT=4; vT2=5; vQ=6; vI=7; vL16=8; vSt=9
    NKS=10
    def frag(j,i):
        idx=j*36+i*4
        if j<6: return ("v",16+idx)
        return ("a",80+(j-6)*36+i*4)
    def R(t,n): return f"{t[0]}[{t[1]}:{t[1]+n-1}]"
    a("s_cmp_ge_u32 s2, 256")
    a("s_cbranch_scc1 Lout_end")
    a("s_load_dwordx2 s[4:5], s[0:1], 88")
    a("s_load_dwordx2 s[6:7], s[0:1], 72")
    a(f"v_and_b32 v{vLane}, 63, v0")
    a(f"v_lshrrev_b32 v{vT}, 6, v0")
    a(f"v_lshlrev_b32 v{vL16}, 4, v{vLane}")
    a(f"v_readfirstlane_b32 s{sWv}, v{vT}")
    a(f"v_lshrrev_b32 v{vQ}, 4, v{vLane}")
    a(f"v_and_b32 v{vI}, 15, v{vLane}")
    a(f"s_and_b32 s{sT}, s2, 7")
    a(f"s_lshr_b32 s{sT2}, s2, 3")
    a(f"s_lshr_b32 s{sMB}, s{sT}, 1")
    a(f"s_lshl_b32 s{sMB}, s{sMB}, 3")
    a(f"s_and_b32 s23, s{sT2}, 7")
    a(f"s_add_u32 s{sMB}, s{sMB}, s23")
    a(f"s_and_b32 s{sNB}, s{sT}, 1")
    a(f"s_lshl_b32 s{sNB}, s{sNB}, 2")
    a(f"s_lshr_b32 s{sT2}, s{sT2}, 3")
    a(f"s_add_u32 s{sNB}, s{sNB}, s{sT2}")
    a(f"v_lshlrev_b32 v{vOo}, 9, v{vQ}")
    a(f"v_lshl_add_u32 v{vOo}, v{vI}, 4, v{vOo}")
    a(f"s_mul_i32 s{sOB}, s{sMB}, {2*81920}")
    a(f"s_mul_i32 s{sT}, s{sWv}, {NKS*2048}")
    a(f"s_add_u32 s{sOB}, s{sOB}, s{sT}")
    a(f"s_add_u32 s{sOB}, s{sOB}, {WS_O}")
    a(f"s_add_u32 s24, s{sOB}, 81920")
    a(f"s_mul_i32 s{sWB}, s{sNB}, {40*5120}")
    a(f"s_mul_i32 s{sT}, s{sWv}, {NKS*5120}")
    a(f"s_add_u32 s{sWB}, s{sWB}, s{sT}")
    a(f"s_add_u32 s{sWB}, s{sWB}, {WS_WT}")
    a(f"s_add_u32 s25, s{sWB}, 4096")
    a(f"s_mov_b32 s{SWS+2}, {WS_END}"); a(f"s_mov_b32 s{SWS+3}, 0x00020000")
    a(f"s_mov_b32 s{SO+2}, {2048*1280}"); a(f"s_mov_b32 s{SO+3}, 0x00020000")
    a("s_waitcnt lgkmcnt(0)")
    a(f"s_mov_b32 s{SWS}, s4"); a(f"s_mov_b32 s{SWS+1}, s5")
    a(f"s_mov_b32 s{SO}, s6"); a(f"s_mov_b32 s{SO+1}, s7")
    def loads(j):
        for s in range(4):
            so = sOB if s<2 else 24
            a(f"buffer_load_dwordx4 {R(frag(j,s),4)}, v{vOo}, {sr(SWS,4)}, s{so} offen offset:{(s&1)*256}")
        for t in range(5):
            if t<4: a(f"buffer_load_dwordx4 {R(frag(j,4+t),4)}, v{vL16}, {sr(SWS,4)}, s{sWB} offen offset:{t*1024}")
            else: a(f"buffer_load_dwordx4 {R(frag(j,4+t),4)}, v{vL16}, {sr(SWS,4)}, s25 offen")
        if j<NKS-1:
            a(f"s_add_u32 s{sOB}, s{sOB}, 2048"); a("s_add_u32 s24, s24, 2048")
            a(f"s_add_u32 s{sWB}, s{sWB}, 5120"); a("s_add_u32 s25, s25, 5120")
    for j in range(7): loads(j)
    for j in range(NKS):
        a(f"s_waitcnt vmcnt({9*(min(NKS-1,j+6)-j)})")
        for s in range(4):
            for t in range(5):
                acc=(s*5+t)*4
                c = "0" if j==0 else f"a[{acc}:{acc+3}]"
                a(f"v_mfma_f32_16x16x32_bf16 a[{acc}:{acc+3}], {R(frag(j,4+t),4)}, {R(frag(j,s),4)}, {c}")
        if j+7<NKS: loads(j+7)
    a("s_nop 7")
    for s in range(4):
        a(f"s_sub_u32 s{sT}, s{sWv}, {s+1}")
        a(f"s_and_b32 s{sT}, s{sT}, 3")
        a(f"s_cmp_eq_u32 s{sT}, 3")
        a(f"s_cbranch_scc1 Lout_skip{s}")
        a(f"s_mul_i32 s{sT}, s{sT}, 5120")
        a(f"v_add_u32 v{vT}, s{sT}, v{vL16}")
        for t in range(5):
            acc=(s*5+t)*4
            a(f"ds_write_b128 v{vT}, a[{acc}:{acc+3}] offset:{s*15360+t*1024}")
        a(f"s_branch Lout_next{s}")
        a.label(f"Lout_skip{s}")
        for r in range(20): a(f"v_accvgpr_read_b32 v{16+r}, a{s*20+r}")
        a.label(f"Lout_next{s}")
    a(f"s_mul_i32 s{sT}, s{sWv}, 15360")
    a(f"v_add_u32 v{vT}, s{sT}, v{vL16}")
    a(f"s_lshl_b32 s{sT}, s{sMB}, 6")
    a(f"s_lshl_b32 s{sT2}, s{sWv}, 4")
    a(f"s_add_u32 s{sT}, s{sT}, s{sT2}")
    a(f"s_mul_i32 s{sT}, s{sT}, 1280")
    a(f"s_mul_i32 s{sT2}, s{sNB}, 160")
    a(f"s_add_u32 s{sT}, s{sT}, s{sT2}")
    a(f"v_mul_u32_u24 v{vSt}, 1280, v{vI}")
    a(f"v_lshl_add_u32 v{vT2}, v{vQ}, 3, v{vSt}")
    a(f"v_lshl_add_u32 v{vSt}, v{vQ}, 4, v{vSt}")
    a("s_waitcnt lgkmcnt(0)")
    a("s_barrier")
    for sl in range(3):
        for t in range(5):
            a(f"ds_read_b128 {vr(40+sl*20+t*4,4)}, v{vT} offset:{sl*5120+t*1024}")
    for sl in range(3):
        a(f"s_waitcnt lgkmcnt({10-5*sl})")
        for r in range(20): a(f"v_add_f32 v{16+r}, v{16+r}, v{40+sl*20+r}")
    for i in range(10): a(f"v_cvt_pk_bf16_f32 v{100+i}, v{16+2*i}, v{17+2*i}")
    a(f"buffer_store_dwordx4 v[100:103], v{vSt}, {sr(SO,4)}, s{sT} offen")
    a(f"buffer_store_dwordx4 v[104:107], v{vSt}, {sr(SO,4)}, s{sT} offen offset:64")
    a(f"buffer_store_dwordx2 v[108:109], v{vT2}, {sr(SO,4)}, s{sT} offen offset:128")
    a.label("Lout_end")
    a("s_endpgm")
    return a.text(), (256,256+224), 256, 256, 61440
```

```python
from gen_common import *
import struct
CQ=(20**-0.5)*1.4426950408889634
def fbits(x): return struct.unpack("<I",struct.pack("<f",x))[0]

def gen_proj(prof=False):
    a=A()
    STG=40960; XO=0; WO=16384; EO=36864
    SX=8; SW=12; SE=16; SWS=20
    sMB=24; sNB=25; sWv=26; sLD=27; sKX=28; sKW=29; sKE=30; sStepW=31; sStepE=32; sBufD=33; sBufR=34; sIt=35
    sTT=36; sHS=37; sOm=38; sOr=39; sScale=40; sM0a=41
    sT=46; sT2=47; sT3=48
    vLane=1; vD=2
    vXb=7; vXa=8
    vWb=12
    vWa=15
    vT=18; vT2=19; vT3=20; vN=21; vH=22; vOm=23; vOr=24; vT4=25; vT5=26
    ACC=[32,48,64]
    FX=[80,84]
    FW=[[88,92,96],[100,104,108]]
    NV=112
    a("s_cmp_ge_u32 s2, 256")
    a("s_cbranch_scc1 Lproj_end")
    a("s_load_dwordx4 s[52:55], s[0:1], 0")
    a("s_load_dwordx4 s[56:59], s[0:1], 16")
    a("s_load_dwordx2 s[60:61], s[0:1], 48")
    a("s_load_dwordx2 s[62:63], s[0:1], 64")
    a("s_load_dwordx2 s[4:5], s[0:1], 88")
    a(f"v_and_b32 v{vLane}, 63, v0")
    a(f"v_lshrrev_b32 v{vT}, 6, v0")
    a(f"v_and_b32 v{vN}, 31, v0")
    a(f"v_readfirstlane_b32 s{sWv}, v{vT}")
    a(f"v_lshrrev_b32 v{vH}, 5, v{vLane}")
    a(f"s_and_b32 s{sT}, s2, 7")
    a(f"s_lshr_b32 s{sT2}, s2, 3")
    a(f"s_lshr_b32 s{sMB}, s{sT}, 1")
    a(f"s_lshl_b32 s{sMB}, s{sMB}, 2")
    a(f"s_and_b32 s{sT3}, s{sT2}, 3")
    a(f"s_add_u32 s{sMB}, s{sMB}, s{sT3}")
    a(f"s_and_b32 s{sNB}, s{sT}, 1")
    a(f"s_lshl_b32 s{sNB}, s{sNB}, 3")
    a(f"s_lshr_b32 s{sT2}, s{sT2}, 2")
    a(f"s_add_u32 s{sNB}, s{sNB}, s{sT2}")
    a(f"s_cmp_lt_u32 s{sNB}, 4")
    a(f"s_movk_i32 s{sLD}, 3840"); a(f"s_cselect_b32 s{sLD}, 1280, s{sLD}")
    a(f"s_cselect_b32 s{sT}, 0, 4")
    a(f"s_sub_u32 s{sT}, s{sNB}, s{sT}")
    a(f"s_mul_i32 s{sKW}, s{sT}, 320")
    a(f"s_lshl_b32 s{sStepW}, s{sLD}, 6")
    a(f"s_mul_i32 s{sKX}, s{sMB}, {128*1280}")
    a(f"s_mov_b32 s{sKE}, 0")
    a(f"s_lshl_b32 s{sT}, s{sWv}, 4")
    a(f"v_lshrrev_b32 v{vT}, 3, v{vLane}")
    a(f"v_add_u32 v{vT}, s{sT}, v{vT}")
    a(f"v_and_b32 v{vT2}, 7, v{vLane}")
    for e in range(2):
        if e: a(f"v_add_u32 v{vT}, 8, v{vT}")
        a(f"v_bfe_u32 v{vT3}, v{vT}, 1, 3")
        a(f"v_xor_b32 v{vT3}, v{vT3}, v{vT2}")
        a(f"v_lshlrev_b32 v{vT3}, 4, v{vT3}")
        a(f"v_mul_u32_u24 v{vD+e}, 1280, v{vT}")
        a(f"v_add_u32 v{vD+e}, v{vD+e}, v{vT3}")
    a(f"s_lshl_b32 s{sM0a}, s{sWv}, 11")
    a(f"s_add_u32 s{sM0a+1}, s{sM0a}, 1024")
    a(f"s_mul_i32 s{sT}, s{sWv}, 3")
    a(f"s_lshl_b32 s{sT2}, s{sWv}, 1")
    a(f"s_add_u32 s{sT2}, s{sT2}, 4")
    a(f"s_cmp_lt_u32 s{sWv}, 4")
    a(f"s_cselect_b32 s{sT}, s{sT}, s{sT2}")
    a(f"s_lshl_b32 s{sT2}, s{sT}, 6")
    a(f"v_add_u32 v{vT}, s{sT2}, v{vLane}")
    a(f"s_lshl_b32 s{sT}, s{sT}, 10")
    for e in range(3):
        if e: a(f"v_add_u32 v{vT}, 64, v{vT}")
        a(f"v_mul_u32_u24 v{vT2}, 3277, v{vT}")
        a(f"v_lshrrev_b32 v{vT2}, 16, v{vT2}")
        a(f"v_mul_u32_u24 v{vT3}, 20, v{vT2}")
        a(f"v_sub_u32 v{vT3}, v{vT}, v{vT3}")
        a(f"v_lshlrev_b32 v{vT3}, 4, v{vT3}")
        a(f"v_mul_lo_u32 v{vD+2+e}, v{vT2}, s{sLD}")
        a(f"v_add_u32 v{vD+2+e}, v{vD+2+e}, v{vT3}")
        a(f"s_add_u32 s{sM0a+2+e}, s{sT}, {WO+1024*e}")
    a(f"s_cmp_lt_u32 s{sWv}, 4")
    a("s_cbranch_scc1 Lproj_noE")
    a(f"s_sub_u32 s{sT}, s{sWv}, 4")
    a(f"s_lshl_b32 s{sT}, s{sT}, 10")
    a(f"v_lshlrev_b32 v{vD+4}, 4, v{vLane}")
    a(f"v_add_u32 v{vD+4}, s{sT}, v{vD+4}")
    a(f"s_add_u32 s{sM0a+4}, s{sT}, {EO}")
    a(f"s_cmp_eq_u32 s{sNB}, 2")
    a(f"s_movk_i32 s{sT}, 2560"); a(f"s_cselect_b32 s{sT}, 128, s{sT}")
    a(f"v_cmp_le_u32 vcc, s{sT}, v{vD+4}")
    a(f"v_mov_b32 v{vT}, 0x40000000")
    a("s_nop 0")
    a(f"v_cndmask_b32 v{vD+4}, v{vD+4}, v{vT}, vcc")
    a.label("Lproj_noE")
    a(f"s_cmp_eq_u32 s{sNB}, 2")
    a(f"s_movk_i32 s{sStepE}, 2560"); a(f"s_cselect_b32 s{sStepE}, 128, s{sStepE}")
    a("s_waitcnt lgkmcnt(0)")
    a(f"s_mov_b32 s{SX}, s52"); a(f"s_mov_b32 s{SX+1}, s53"); a(f"s_mov_b32 s{SX+2}, {2048*1280}"); a(f"s_mov_b32 s{SX+3}, 0x00020000")
    a(f"s_cmp_lt_u32 s{sNB}, 4")
    a(f"s_cselect_b32 s{SW}, s54, s60"); a(f"s_cselect_b32 s{SW+1}, s55, s61")
    a(f"s_mov_b32 s{SW+2}, {640*3840}"); a(f"s_cselect_b32 s{SW+2}, {640*1280}, s{SW+2}"); a(f"s_mov_b32 s{SW+3}, 0x00020000")
    a(f"s_cmp_eq_u32 s{sNB}, 1")
    a(f"s_cselect_b32 s{SE}, s58, s56"); a(f"s_cselect_b32 s{SE+1}, s59, s57")
    a(f"s_mov_b32 s{SE+2}, 25600")
    a(f"s_cmp_eq_u32 s{sNB}, 2")
    a(f"s_cselect_b32 s{SE}, s62, s{SE}"); a(f"s_cselect_b32 s{SE+1}, s63, s{SE+1}")
    a(f"s_cselect_b32 s{SE+2}, 1280, s{SE+2}")
    a(f"s_cmp_gt_u32 s{sNB}, 2")
    a(f"s_cselect_b32 s{SE+2}, 0, s{SE+2}")
    a(f"s_mov_b32 s{SE+3}, 0x00020000")
    a(f"s_mov_b32 s{SWS}, s4"); a(f"s_mov_b32 s{SWS+1}, s5"); a(f"s_mov_b32 s{SWS+2}, {WS_END}"); a(f"s_mov_b32 s{SWS+3}, 0x00020000")
    a(f"s_mov_b32 s{sBufD}, 0")
    def dma_stage(g):
        for e in range(5):
            a(f"s_add_u32 m0, s{sM0a+e}, s{sBufD}")
            if e<2: srd,so=SX,sKX
            elif e<4 or g==0: srd,so=SW,sKW
            else: srd,so=SE,sKE
            a("s_nop 0")
            a(f"buffer_load_dwordx4 v{vD+e}, {sr(srd,4)}, s{so} offen lds")
        a(f"s_add_u32 s{sKX}, s{sKX}, 128")
        a(f"s_add_u32 s{sKW}, s{sKW}, s{sStepW}")
        if g==1: a(f"s_add_u32 s{sKE}, s{sKE}, s{sStepE}")
        a(f"s_add_u32 s{sBufD}, s{sBufD}, {STG}")
        a(f"s_cmp_eq_u32 s{sBufD}, {4*STG}")
        a(f"s_cselect_b32 s{sBufD}, 0, s{sBufD}")
    a(f"s_cmp_lt_u32 s{sWv}, 4")
    a("s_cbranch_scc0 Lproj_pre1")
    for s in range(4): dma_stage(0)
    a("s_branch Lproj_pre2")
    a.label("Lproj_pre1")
    for s in range(4): dma_stage(1)
    a.label("Lproj_pre2")
    a(f"s_and_b32 s{sT}, s{sWv}, 3")
    a(f"s_lshl_b32 s{sTT}, s{sMB}, 2")
    a(f"s_add_u32 s{sTT}, s{sTT}, s{sT}")
    a(f"s_lshl_b32 s{sT}, s{sT}, 12")
    a(f"v_bfe_u32 v{vT}, v{vN}, 1, 3")
    a(f"v_xor_b32 v{vT}, v{vT}, v{vH}")
    a(f"v_lshlrev_b32 v{vT}, 4, v{vT}")
    a(f"v_lshlrev_b32 v{vXb}, 7, v{vN}")
    a(f"v_add_u32 v{vXb}, v{vXb}, v{vT}")
    a(f"v_add_u32 v{vXb}, s{sT}, v{vXb}")
    a(f"v_bfe_u32 v{vT4}, v{vLane}, 2, 2")
    a(f"v_lshl_add_u32 v{vT4}, v{vH}, 3, v{vT4}")
    a(f"v_bfe_u32 v{vT5}, v{vLane}, 4, 1")
    a(f"v_and_b32 v{vT}, 3, v{vLane}")
    a(f"v_lshl_add_u32 v{vT5}, v{vT5}, 2, v{vT}")
    a(f"s_cmp_lt_u32 s{sNB}, 8")
    a(f"s_mov_b32 s{sHS}, {KV_BYTES}"); a(f"s_cselect_b32 s{sHS}, {QH_BYTES}, s{sHS}")
    a(f"s_cselect_b32 s{sScale}, {fbits(CQ)}, 1.0")
    a(f"s_lshr_b32 s{sT}, s{sTT}, 3")
    a(f"s_mul_i32 s{sT}, s{sT}, {CHUNK}")
    a(f"s_add_u32 s49, s{sT}, {WS_KV}")
    a(f"s_and_b32 s50, s{sTT}, 7")
    a(f"v_and_b32 v{vT}, 0x13, v{vN}")
    a(f"v_and_b32 v{vT2}, 4, v{vN}")
    a(f"v_lshl_or_b32 v{vT}, v{vT2}, 1, v{vT}")
    a(f"v_and_b32 v{vT2}, 8, v{vN}")
    a(f"v_lshrrev_b32 v{vT2}, 1, v{vT2}")
    a(f"v_or_b32 v27, v{vT}, v{vT2}")
    a(f"s_mov_b32 s{sBufR}, 0")
    a(f"s_mov_b32 s{sIt}, 0")
    for i in range(48): a(f"v_mov_b32 v{ACC[0]+i}, 0")
    a(f"s_cmp_lt_u32 s{sWv}, 4")
    a("s_cbranch_scc0 Lproj_g1")
    a(f"s_cmp_ge_u32 s{sNB}, 12")
    a("s_cbranch_scc1 Lproj_V0")
    a("s_branch Lproj_Q0")
    a.label("Lproj_g1")
    a(f"s_cmp_ge_u32 s{sNB}, 12")
    a("s_cbranch_scc1 Lproj_V1")
    a(f"s_cmp_eq_u32 s{sNB}, 0")
    a("s_cbranch_scc1 Lproj_Q1k")
    a(f"s_cmp_eq_u32 s{sNB}, 1")
    a("s_cbranch_scc1 Lproj_Q1v")
    a(f"s_cmp_eq_u32 s{sNB}, 2")
    a("s_cbranch_scc1 Lproj_Q1g")
    a("s_branch Lproj_Q1")

    def path(name,g,typ,extra):
        tiles=[0,1,2] if g==0 else [3,4]
        kinds=[(typ,t) for t in tiles]
        if extra: kinds.append((extra,5))
        nt=len(kinds)
        a.label(name)
        for i,(k,t) in enumerate(kinds):
            d=vWb+i
            if k=='Q' and t<4:
                a(f"v_lshrrev_b32 v{vT}, 2, v{vT5}")
                a(f"v_mul_u32_u24 v{vT}, 5, v{vT}")
                a(f"v_and_b32 v{vT2}, 1, v{vT5}")
                a(f"v_lshl_add_u32 v{vT}, v{vT2}, 1, v{vT}")
                a(f"v_bfe_u32 v{vT2}, v{vT5}, 1, 1")
                a(f"v_add3_u32 v{vT}, v{vT}, v{vT2}, {10*t}")
            elif k=='Q':
                a(f"v_mul_u32_u24 v{vT}, 5, v{vT5}")
                a(f"v_add_u32 v{vT}, 4, v{vT}")
            elif k=='V':
                a(f"v_add_u32 v{vT}, {8*t}, v{vT5}")
            elif k=='k':
                a(f"v_and_b32 v{vT2}, 1, v{vT5}")
                a(f"v_lshlrev_b32 v{vT}, 1, v{vT2}")
                a(f"v_bfe_u32 v{vT2}, v{vT5}, 1, 1")
                a(f"v_add_u32 v{vT}, v{vT}, v{vT2}")
                a(f"v_cmp_lt_u32 vcc, 3, v{vT5}")
                a("s_nop 1")
                a(f"v_cndmask_b32 v{vT}, v{vT}, 4, vcc")
            elif k=='v':
                a(f"v_min_u32 v{vT}, 4, v{vT5}")
            if k in 'QV':
                a(f"v_mul_u32_u24 v{d}, 320, v{vT4}")
                a(f"v_lshl_add_u32 v{d}, v{vT}, 3, v{d}")
                a(f"v_add_u32 v{d}, {WO}, v{d}")
            elif k in 'kv':
                a(f"v_mul_u32_u24 v{d}, 40, v{vT4}")
                a(f"v_lshl_add_u32 v{d}, v{vT}, 3, v{d}")
                a(f"v_add_u32 v{d}, {EO}, v{d}")
            else:
                a(f"v_lshlrev_b32 v{d}, 4, v{vH}")
                a(f"v_add_u32 v{d}, {EO}, v{d}")
        def addr_update():
            a(f"v_add_u32 v{vXa}, s{sBufR}, v{vXb}")
            for i in range(nt): a(f"v_add_u32 v{vWa+i}, s{sBufR}, v{vWb+i}")
            for ks in range(1,4): a(f"v_xor_b32 v{vXa+ks}, {32*ks}, v{vXa}")
            a(f"s_add_u32 s{sBufR}, s{sBufR}, {STG}")
            a(f"s_cmp_eq_u32 s{sBufR}, {4*STG}")
            a(f"s_cselect_b32 s{sBufR}, 0, s{sBufR}")
        def nreads():
            return 1+sum(1 if k=='g' else 2 for k,t in kinds)
        def reads(ks,f):
            a(f"ds_read_b128 {vr(FX[f],4)}, v{vXa+ks}")
            for i,(k,t) in enumerate(kinds):
                if k in 'QV':
                    a(f"ds_read_b64_tr_b16 {vr(FW[f][i],2)}, v{vWa+i} offset:{5120*ks}")
                    a(f"ds_read_b64_tr_b16 {vr(FW[f][i]+2,2)}, v{vWa+i} offset:{5120*ks+1280}")
                elif k in 'kv':
                    a(f"ds_read_b64_tr_b16 {vr(FW[f][i],2)}, v{vWa+i} offset:{640*ks}")
                    a(f"ds_read_b64_tr_b16 {vr(FW[f][i]+2,2)}, v{vWa+i} offset:{640*ks+160}")
                else:
                    a(f"ds_read_b128 {vr(FW[f][i],4)}, v{vWa+i} offset:{32*ks}")
        def mfmas(f):
            for i,(k,t) in enumerate(kinds):
                if k in 'Vv': A_,B_=FX[f],FW[f][i]
                else: A_,B_=FW[f][i],FX[f]
                a(f"v_mfma_f32_32x32x16_bf16 {vr(ACC[i],16)}, {vr(A_,4)}, {vr(B_,4)}, {vr(ACC[i],16)}")
        addr_update()
        a("s_waitcnt vmcnt(15)")
        a("s_barrier")
        reads(0,0)
        a.label(name+"_loop")
        nr=nreads()
        reads(1,1); a(f"s_waitcnt lgkmcnt({nr})"); mfmas(0)
        reads(2,0); a(f"s_waitcnt lgkmcnt({nr})"); mfmas(1)
        reads(3,1); a(f"s_waitcnt lgkmcnt({nr})"); mfmas(0)
        a(f"s_cmp_lt_u32 s{sIt}, 6")
        a(f"s_cselect_b32 s{SX+2}, s{SX+2}, 0")
        a(f"s_cselect_b32 s{SW+2}, s{SW+2}, 0")
        a(f"s_cselect_b32 s{SE+2}, s{SE+2}, 0")
        addr_update()
        a("s_waitcnt vmcnt(10) lgkmcnt(0)")
        a("s_barrier")
        reads(0,0)
        mfmas(1)
        dma_stage(g)
        a(f"s_add_u32 s{sIt}, s{sIt}, 1")
        a(f"s_cmp_lt_u32 s{sIt}, 10")
        a(f"s_cbranch_scc1 {name}_loop")
        a("s_waitcnt lgkmcnt(0)")
        TMP=FX[0]
        if typ=='Q':
            a(f"s_cmp_lt_u32 s{sNB}, 8")
            a(f"s_cselect_b64 vcc, -1, 0")
            a(f"v_cndmask_b32 v{vT}, v27, v{vN}, vcc")
            a(f"v_lshlrev_b32 v{vOm}, 9, v{vH}")
            a(f"v_lshl_add_u32 v{vOm}, v{vT}, 4, v{vOm}")
            a(f"v_mul_lo_u32 v{vOr}, v{vH}, s{sHS}")
            a(f"v_lshl_add_u32 v{vOr}, v{vT}, 3, v{vOr}")
            a(f"s_mul_i32 s{sT}, s{sNB}, {8*QH_BYTES}")
            a(f"s_lshl_b32 s{sT2}, s{sTT}, 10")
            a(f"s_add_u32 s{sOm}, s{sT}, s{sT2}")
            a(f"s_lshl_b32 s{sT2}, s{sTT}, 8")
            a(f"s_add_u32 s{sOr}, s{sT}, s{sT2}")
            a(f"s_add_u32 s{sOr}, s{sOr}, 65536")
            a(f"s_cmp_lt_u32 s{sNB}, 8")
            a(f"s_cbranch_scc1 {name}_isq")
            a(f"s_sub_u32 s{sT}, s{sNB}, 8")
            a(f"s_mul_i32 s{sT}, s{sT}, {8*KV_BYTES}")
            a(f"s_add_u32 s{sT}, s{sT}, s49")
            a(f"s_lshl_b32 s{sT2}, s50, 10")
            a(f"s_add_u32 s{sOm}, s{sT}, s{sT2}")
            a(f"s_lshl_b32 s{sT2}, s50, 8")
            a(f"s_add_u32 s{sOr}, s{sT}, s{sT2}")
            a(f"s_add_u32 s{sOr}, s{sOr}, 8192")
            a.label(name+"_isq")
            a(f"v_mov_b32 v{vT3}, s{sScale}")
            a("s_nop 4")
        else:
            a("s_nop 15")
        tp=TMP
        for i,(k,t) in enumerate(kinds):
            acc=ACC[i]
            if k=='Q':
                for r in range(16): a(f"v_mul_f32 v{acc+r}, v{acc+r}, v{vT3}")
            if k!='g':
                for r in range(8): a(f"v_cvt_pk_bf16_f32 v{tp+r}, v{acc+2*r}, v{acc+2*r+1}")
            if k=='Q' and t<4:
                for hh in range(2):
                    a(f"s_mul_i32 s{sT}, s{sHS}, {2*t+hh}")
                    a(f"s_add_u32 s{sT}, s{sT}, s{sOm}")
                    a(f"buffer_store_dwordx4 {vr(tp+4*hh,4)}, v{vOm}, {sr(SWS,4)}, s{sT} offen")
            elif k=='Q':
                for rg in range(4):
                    a(f"s_mul_i32 s{sT}, s{sHS}, {2*rg}")
                    a(f"s_add_u32 s{sT}, s{sT}, s{sOr}")
                    a(f"buffer_store_dwordx2 {vr(tp+2*rg,2)}, v{vOr}, {sr(SWS,4)}, s{sT} offen")
            elif k in 'Vv':
                if k=='V':
                    a(f"v_add_u32 v{vT}, {32*t}, v{vN}")
                    a(f"v_mul_u32_u24 v{vT2}, 205, v{vT}")
                    a(f"v_lshrrev_b32 v{vT2}, 12, v{vT2}")
                    a(f"v_mul_u32_u24 v{vT4}, 20, v{vT2}")
                    a(f"v_sub_u32 v{vT}, v{vT}, v{vT4}")
                else:
                    a(f"v_mov_b32 v{vT}, v{vN}")
                a(f"v_and_b32 v{vT4}, 0x13, v{vT}")
                a(f"v_and_b32 v{vT5}, 4, v{vT}")
                a(f"v_lshl_or_b32 v{vT4}, v{vT5}, 1, v{vT4}")
                a(f"v_and_b32 v{vT5}, 8, v{vT}")
                a(f"v_lshrrev_b32 v{vT5}, 1, v{vT5}")
                a(f"v_or_b32 v{vT4}, v{vT4}, v{vT5}")
                a(f"v_mul_u32_u24 v{vT5}, 320, v{vH}")
                a(f"v_lshl_add_u32 v{vT4}, v{vT4}, 4, v{vT5}")
                if k=='V':
                    a(f"s_mov_b32 s{sT}, {KV_BYTES}")
                    a(f"v_mul_lo_u32 v{vT2}, v{vT2}, s{sT}")
                    a(f"v_add_u32 v{vT4}, v{vT4}, v{vT2}")
                    a(f"s_sub_u32 s{sT}, s{sNB}, 12")
                    a(f"s_mul_i32 s{sT}, s{sT}, {8*KV_BYTES}")
                else:
                    a(f"s_mov_b32 s{sT}, {32*KV_BYTES}")
                    a(f"v_cmp_gt_u32 vcc, 20, v{vN}")
                    a("s_nop 1")
                    a("s_and_b64 exec, exec, vcc")
                a(f"s_add_u32 s{sT}, s{sT}, s49")
                a(f"s_mul_i32 s{sT2}, s50, 1280")
                a(f"s_add_u32 s{sT}, s{sT}, s{sT2}")
                a(f"s_add_u32 s{sT}, s{sT}, 10240")
                a(f"buffer_store_dwordx4 {vr(tp,4)}, v{vT4}, {sr(SWS,4)}, s{sT} offen")
                a(f"buffer_store_dwordx4 {vr(tp+4,4)}, v{vT4}, {sr(SWS,4)}, s{sT} offen offset:640")
            elif k=='k':
                a(f"v_lshlrev_b32 v{vT}, 9, v{vH}")
                a(f"v_lshl_add_u32 v{vT}, v27, 4, v{vT}")
                a(f"v_lshlrev_b32 v{vT2}, 3, v27")
                a(f"s_add_u32 s{sT}, s49, {32*KV_BYTES}")
                a(f"s_lshl_b32 s{sT2}, s50, 10")
                a(f"s_add_u32 s{sT2}, s{sT2}, s{sT}")
                a(f"buffer_store_dwordx4 {vr(tp,4)}, v{vT}, {sr(SWS,4)}, s{sT2} offen")
                a(f"s_lshl_b32 s{sT2}, s50, 8")
                a(f"s_add_u32 s{sT2}, s{sT2}, s{sT}")
                a(f"s_add_u32 s{sT2}, s{sT2}, 8192")
                a("s_mov_b32 exec_hi, 0")
                a(f"buffer_store_dwordx2 {vr(tp+4,2)}, v{vT2}, {sr(SWS,4)}, s{sT2} offen")
            elif k=='g':
                a(f"v_cvt_pk_bf16_f32 v{vT}, v{acc}, v{acc}")
                a(f"v_lshlrev_b32 v{vT}, 16, v{vT}")
                a(f"v_mul_f32 v{vT}, 0xbfb8aa3b, v{vT}")
                a(f"v_exp_f32 v{vT}, v{vT}")
                a("s_nop 0")
                a(f"v_add_f32 v{vT}, 1.0, v{vT}")
                a(f"v_rcp_f32 v{vT}, v{vT}")
                a("s_nop 0")
                a(f"v_cvt_pk_bf16_f32 v{vT}, v{vT}, v{vT}")
                a(f"v_lshlrev_b32 v{vT}, 16, v{vT}")
                a(f"v_sub_f32 v{vT2}, 1.0, v{vT}")
                a(f"v_cvt_pk_bf16_f32 v{vT2}, v{vT2}, v{vT2}")
                a(f"v_lshlrev_b32 v{vT2}, 16, v{vT2}")
                a(f"v_lshlrev_b32 v{vT4}, 2, v{vN}")
                a(f"s_lshl_b32 s{sT}, s{sTT}, 7")
                a(f"s_add_u32 s{sT}, s{sT}, {WS_G}")
                a(f"s_add_u32 s{sT2}, s{sT}, 8192")
                a("s_mov_b32 exec_hi, 0")
                a(f"buffer_store_dword v{vT}, v{vT4}, {sr(SWS,4)}, s{sT} offen")
                a(f"buffer_store_dword v{vT2}, v{vT4}, {sr(SWS,4)}, s{sT2} offen")
            tp+=8
        a("s_endpgm")
    path("Lproj_Q0",0,'Q',None)
    path("Lproj_V0",0,'V',None)
    path("Lproj_Q1",1,'Q',None)
    path("Lproj_V1",1,'V',None)
    path("Lproj_Q1k",1,'Q','k')
    path("Lproj_Q1v",1,'Q','v')
    path("Lproj_Q1g",1,'Q','g')
    a.label("Lproj_end")
    a("s_endpgm")
    return a.text(), NV, 256, 512, 4*STG
```

```python
import sys, argparse
from gen_common import *
from gen_attn import gen_attn
HDR=open('gated_mix__grouped_kv_mqa__mha_block__prompt.s.ref').read().split('; Override launch')[0]

def kd(name,nv,ns=64):
    if isinstance(nv,tuple): acc,nv=nv
    else: acc=(nv+3)//4*4
    return f""".p2align 6
.amdhsa_kernel {name}
  .amdhsa_next_free_vgpr {nv}
  .amdhsa_next_free_sgpr {ns}
  .amdhsa_accum_offset {acc}
  .amdhsa_group_segment_fixed_size 0
  .amdhsa_kernarg_size 96
  .amdhsa_user_sgpr_count 2
  .amdhsa_user_sgpr_kernarg_segment_ptr 1
  .amdhsa_system_sgpr_workgroup_id_x 1
.end_amdhsa_kernel
"""
def build(kernels):
    o=HDR
    for n,t,nv,g,b,l in kernels:
        o+=f"; @launch kernel={n} grid=({g},1,1) block=({b},1,1) lds={l}\n"
    o+='.amdgcn_target "amdgcn-amd-amdhsa--gfx950"\n.text\n'
    for n,t,nv,g,b,l in kernels:
        o+=f".globl {n}\n.p2align 8\n.type {n},@function\n{n}:\n{t}\n"
    o+='.section .rodata,"a"\n'
    for n,t,nv,g,b,l in kernels:
        o+=kd(n,nv)
    return o
if __name__=="__main__":
    ap=argparse.ArgumentParser()
    ap.add_argument("--nq",type=int,default=1)
    ap.add_argument("--only",default="")
    ap.add_argument("--prof",action="store_true")
    ap.add_argument("--var",default="")
    ap.add_argument("--prio",type=int,default=1)
    ap.add_argument("--zrows",type=int,default=1)
    ap.add_argument("-o",default="gated_mix__grouped_kv_mqa__mha_block__prompt.s")
    args=ap.parse_args()
    ks=[]
    if args.only in ("","proj"):
        try:
            from gen_proj import gen_proj
            t,nv,g,b,l=gen_proj(); ks.append(("proj_kernel",t,nv,g,b,l))
        except ImportError: pass
    if args.only in ("","attn"):
        t,nv,b=gen_attn(args.nq,prof=args.prof,var=args.var,prio=args.prio,zrows=args.zrows); ks.append(("attn_kernel",t,nv,256,b,163840))
    if args.only in ("","out"):
        try:
            from gen_out import gen_out
            t,nv,g,b,l=gen_out(); ks.append(("out_kernel",t,nv,g,b,l))
        except ImportError: pass
    open(args.o,"w").write(build(ks))
```

```python
from gen_common import *

def gen_attn(NQ=1, prof=False, var='', prio=1, zrows=1):
    NW=16//NQ
    NSTEP=160//NW
    a=A()
    S=[16,32]
    O=[48+16*i for i in range(NQ)]
    p=48+16*NQ
    Qm=[p+4*i for i in range(NQ)]; p+=4*NQ
    Km=[p,p+4]; p+=8
    Kr=[p,p+4]; p+=8
    V=[p,p+8]; p+=16
    Qr=[p+2*i for i in range(NQ)]; p+=2*NQ
    WT=p; p+=8
    vWA=p; vWB=p+1; p+=2
    NV=p
    vIDX=1; vKm=2; vKr=3; vV=4; vL16=5; vG=[6,7]; vT=8; vT2=9; vM=[10,11]; vLane=12; vR8=13
    sHQ=12; sQB=13; sKV=14; sW=15; sT=16; sT2=17; sCH=18; sSYNC=19; sRETRY=20; sQT=22
    MV=24; MLO=26; MHI=28; sM0=32; sSRC=33
    def steps_needed(nchunks): return -(-(20*nchunks)//NW)
    a("s_cmp_ge_u32 s2, 256")
    a("s_cbranch_scc1 Lattn_end")
    a("s_load_dwordx2 s[4:5], s[0:1], 88")
    a("s_load_dwordx2 s[6:7], s[0:1], 32")
    a("s_load_dwordx2 s[38:39], s[0:1], 56")
    if prof:
        a("s_memtime s[40:41]"); a("s_memrealtime s[50:51]")
    a(f"v_and_b32 v{vLane}, 63, v0")
    a(f"v_lshrrev_b32 v{vT}, 6, v0")
    a(f"v_lshlrev_b32 v{vL16}, 4, v{vLane}")
    a(f"v_readfirstlane_b32 s{sW}, v{vT}")
    a("s_and_b32 s16, s2, 7")
    a("s_lshr_b32 s17, s2, 3")
    a(f"s_and_b32 s{sQB}, s17, 3")
    a("s_lshr_b32 s17, s17, 2")
    a("s_lshl_b32 s16, s16, 2")
    a("s_and_b32 s23, s17, 3")
    a("s_add_u32 s16, s16, s23")
    a("s_lshr_b32 s17, s17, 2")
    a("s_lshl_b32 s23, s17, 5")
    a(f"s_add_u32 s{sHQ}, s16, s23")
    a("s_cmp_eq_u32 s17, 0")
    a(f"s_cselect_b32 s{sKV}, 32, s16")
    a(f"s_mul_i32 s{sKV}, s{sKV}, {KV_BYTES}")
    a(f"s_add_u32 s{sKV}, s{sKV}, {WS_KV}")
    a(f"s_lshl_b32 s{sM0}, s{sW}, 10")
    a(f"s_add_u32 s{sSRC}, s{sM0}, s{sKV}")
    a(f"s_lshl_b32 s{sQT}, s{sQB}, 4")
    a(f"s_mul_i32 s16, s{sW}, {NQ}")
    a(f"s_add_u32 s{sQT}, s{sQT}, s16")
    a(f"v_and_b32 v{vT}, 31, v{vLane}")
    a(f"v_lshlrev_b32 v{vR8}, 3, v{vT}")
    a(f"v_lshlrev_b32 v{vT2}, 2, v{vT}")
    a(f"s_mov_b32 s10, {WS_END}")
    a("s_mov_b32 s11, 0x00020000")
    a(f"s_mul_i32 s16, s{sHQ}, {QH_BYTES}")
    a(f"s_lshl_b32 s23, s{sQT}, 10")
    a("s_add_u32 s23, s23, s16")
    a(f"s_lshl_b32 s30, s{sQT}, 8")
    a("s_add_u32 s30, s30, s16")
    a("s_add_u32 s30, s30, 65536")
    a("s_lshl_b32 s31, s17, 13")
    a(f"s_lshl_b32 s16, s{sQT}, 7")
    a("s_add_u32 s31, s31, s16")
    a(f"s_add_u32 s31, s31, {WS_G}")
    a(f"s_mov_b32 m0, s{sM0}")
    a("s_waitcnt lgkmcnt(0)")
    a("s_mov_b32 s8, s4")
    a("s_mov_b32 s9, s5")
    def dma(s):
        a(f"buffer_load_dwordx4 v{vL16}, s[8:11], s{sSRC} offen lds")
        if s<NSTEP-1:
            a(f"s_add_u32 s{sM0}, s{sM0}, {NW*1024}")
            a(f"s_add_u32 s{sSRC}, s{sSRC}, {NW*1024}")
            a(f"s_mov_b32 m0, s{sM0}")
            a("s_nop 0")
    N1=steps_needed(1)
    dma(0)
    for i in range(NQ):
        a(f"buffer_load_dwordx4 {vr(Qm[i],4)}, v{vL16}, s[8:11], s23 offen offset:{1024*i}")
    for i in range(NQ):
        a(f"buffer_load_dwordx2 {vr(Qr[i],2)}, v{vR8}, s[8:11], s30 offen offset:{256*i}")
    for s in range(1,N1): dma(s)
    for i in range(NQ):
        a(f"buffer_load_dword v{vG[i]}, v{vT2}, s[8:11], s31 offen offset:{128*i}")
    sF=21
    a(f"s_mul_i32 s{sF}, s2, {NW}")
    a(f"s_add_u32 s{sF}, s{sF}, s{sW}")
    a(f"s_mul_i32 s16, s{sF}, 5243")
    a("s_lshr_b32 s16, s16, 20")
    a("s_mul_i32 s17, s16, 200")
    a(f"s_sub_u32 s17, s{sF}, s17")
    a("s_mul_i32 s23, s17, 205")
    a("s_lshr_b32 s23, s23, 10")
    a("s_mul_i32 s30, s23, 5")
    a("s_sub_u32 s17, s17, s30")
    a("s_cmp_lt_u32 s23, 20")
    a("s_cselect_b32 s36, s6, s38")
    a("s_cselect_b32 s37, s7, s39")
    a("s_cselect_b32 s30, 0, 20")
    a("s_sub_u32 s23, s23, s30")
    a("s_lshl_b32 s23, s23, 2")
    a(f"s_cmp_lt_u32 s{sF}, 1600")
    a(f"s_cselect_b32 s38, {640*1280}, 0")
    a("s_mov_b32 s39, 0x00020000")
    a(f"v_lshrrev_b32 v{vT}, 4, v{vLane}")
    a(f"v_add_u32 v{vT}, s23, v{vT}")
    a(f"v_mul_u32_u24 v{vT2}, 205, v{vT}")
    a(f"v_lshrrev_b32 v{vT2}, 10, v{vT2}")
    a(f"v_mul_u32_u24 v{vWA}, 5, v{vT2}")
    a(f"v_sub_u32 v{vT}, v{vT}, v{vWA}")
    a(f"v_mul_u32_u24 v{vWA}, 40, v{vT2}")
    a(f"v_lshrrev_b32 v{vT2}, 1, v{vT}")
    a(f"v_mul_u32_u24 v{vT2}, 20, v{vT2}")
    a(f"v_and_b32 v{vWB}, 1, v{vT}")
    a(f"v_lshl_add_u32 v{vT2}, v{vWB}, 3, v{vT2}")
    a(f"v_cmp_eq_u32 vcc, 4, v{vT}")
    a(f"v_mov_b32 v{vWB}, {4*1280}")
    a(f"v_mov_b32 v{vT}, {20*1280}")
    a(f"v_cndmask_b32 v{vT2}, v{vT2}, 16, vcc")
    a(f"v_cndmask_b32 v{vWB}, v{vWB}, v{vT}, vcc")
    a(f"v_add_u32 v{vWA}, v{vWA}, v{vT2}")
    a(f"v_mul_u32_u24 v{vWA}, 1280, v{vWA}")
    a(f"v_and_b32 v{vT}, 15, v{vLane}")
    a(f"v_and_b32 v{vT2}, 12, v{vT}")
    a("s_cmp_lt_u32 s17, 4")
    a("s_cselect_b32 s30, -1, 0")
    a(f"v_and_b32 v{vT2}, s30, v{vT2}")
    a(f"v_add_u32 v{vT}, v{vT}, v{vT2}")
    a("s_lshr_b32 s30, s17, 1")
    a("s_lshl_b32 s30, s30, 5")
    a("s_and_b32 s17, s17, 1")
    a("s_lshl_b32 s17, s17, 2")
    a("s_add_u32 s30, s30, s17")
    a("s_mul_i32 s16, s16, 80")
    a("s_add_u32 s30, s30, s16")
    a("s_lshl_b32 s34, s30, 1")
    a(f"v_lshl_add_u32 v{vWA}, v{vT}, 1, v{vWA}")
    a(f"v_add_u32 v{vWB}, v{vWB}, v{vWA}")
    a(f"s_mov_b32 s{MV}, 0x000fffff")
    a(f"s_mov_b32 s{MV+1}, 0x000fffff")
    a(f"s_mov_b32 s{MLO}, -1")
    a(f"s_mov_b32 s{MLO+1}, 0")
    a(f"s_mov_b32 s{MHI}, 0")
    a(f"s_mov_b32 s{MHI+1}, -1")
    a(f"v_mov_b32 v{vIDX}, 0xdddddddd")
    if zrows:
        a(f"v_mov_b32 v{vT2}, 0")
        a("s_mov_b32 s16, 0x01100000")
        a("s_mov_b32 s17, 0x01100000")
        a("s_mov_b64 exec, s[16:17]")
        a(f"v_mov_b32 v{vT2}, 0x3f803f80")
        a("s_mov_b64 exec, -1")
    else:
        a(f"v_mov_b32 v{vT2}, 0x3f803f80")
    for b in range(2):
        for i in range(8): a(f"v_mov_b32 v{V[b]+i}, v{vT2}")
        a(f"v_mov_b32 v{Kr[b]}, 0x3f80"); a(f"v_mov_b32 v{Kr[b]+1}, 0")
        a(f"v_mov_b32 v{Kr[b]+2}, 0x3f80"); a(f"v_mov_b32 v{Kr[b]+3}, 0")
    a(f"s_mov_b32 s{sSYNC}, 2")
    a(f"s_mov_b32 s{sRETRY}, 0")
    a(f"v_lshrrev_b32 v{vT}, 5, v{vLane}")
    a(f"v_mul_u32_u24 v{vT}, 320, v{vT}")
    a(f"v_lshlrev_b32 v{vT2}, 1, v{vR8}")
    a(f"v_add_u32 v14, v{vT}, v{vT2}")
    a(f"v_add_u32 v14, 10240, v14")
    a(f"s_waitcnt vmcnt({NQ})")
    a(f"s_mov_b64 exec, s[{MHI}:{MHI+1}]")
    for i in range(NQ):
        a(f"v_mov_b32 v{Qr[i]}, 0"); a(f"v_mov_b32 v{Qr[i]+1}, 0")
    a("s_mov_b64 exec, -1")
    a("s_barrier")
    if prof: a("s_memtime s[42:43]")
    a.label("Lattn_start")
    a(f"v_mov_b32 v{vKm}, v{vL16}")
    a(f"v_add_u32 v{vKr}, 8192, v{vR8}")
    a(f"v_mov_b32 v{vV}, v14")
    a(f"ds_read_b128 {vr(Km[0],4)}, v{vKm}")
    a(f"ds_read_b128 {vr(Km[1],4)}, v{vKm} offset:1024")
    a(f"s_mov_b64 exec, s[{MLO}:{MLO+1}]")
    a(f"ds_read2_b64 {vr(Kr[0],4)}, v{vKr} offset0:0 offset1:32")
    a(f"s_mov_b64 exec, s[{MV}:{MV+1}]")
    a(f"ds_read_b128 {vr(V[0],4)}, v{vV}")
    a(f"ds_read_b128 {vr(V[0]+4,4)}, v{vV} offset:640")
    a("s_mov_b64 exec, -1")
    a(f"s_cmp_lg_u32 s{sRETRY}, 0")
    a("s_cbranch_scc1 Lattn_havemax")
    a("s_waitcnt lgkmcnt(0)")
    tmp=[[S[0],S[1]]] if NQ==1 else [[S[0],S[1]],[O[0],O[1]]]
    for i in range(NQ):
        for t in range(2):
            a(f"v_mfma_f32_32x32x8_bf16 {vr(tmp[i][t],16)}, {vr(Kr[0]+2*t,2)}, {vr(Qr[i],2)}, 0")
            a(f"v_mfma_f32_32x32x16_bf16 {vr(tmp[i][t],16)}, {vr(Km[t],4)}, {vr(Qm[i],4)}, {vr(tmp[i][t],16)}")
    if NQ==1: a("s_nop 9")
    else: a("s_nop 5")
    for i in range(NQ):
        for t in range(2):
            for r in range(0,16,2):
                if t==0 and r==0: a(f"v_max_f32 v{vM[i]}, v{tmp[i][t]+r}, v{tmp[i][t]+r+1}")
                else: a(f"v_max3_f32 v{vM[i]}, v{tmp[i][t]+r}, v{tmp[i][t]+r+1}, v{vM[i]}")
            if NQ==1 and t==0: a("s_nop 3")
    a.label("Lattn_havemax")
    for i in range(NQ):
        a(f"v_mov_b32 v{vT}, v{vM[i]}")
        a("s_nop 1")
        a(f"v_permlane32_swap_b32 v{vM[i]}, v{vT}")
        a("s_nop 1")
        a(f"v_max_f32 v{vM[i]}, v{vM[i]}, v{vT}")
        a(f"v_xor_b32 v{vM[i]}, 0x80000000, v{vM[i]}")
    a(f"s_mov_b64 exec, s[{MHI}:{MHI+1}]")
    for i in range(NQ):
        a(f"v_lshrrev_b32 v{Qr[i]}, 16, v{vM[i]}")
    a("s_mov_b64 exec, -1")
    a("s_waitcnt lgkmcnt(0)")
    a(f"s_mov_b32 s{sCH}, 0")
    a(f"v_mfma_f32_32x32x8_bf16 {vr(S[0],16)}, {vr(Kr[0],2)}, {vr(Qr[0],2)}, 0")
    a(f"v_mfma_f32_32x32x16_bf16 {vr(S[0],16)}, {vr(Km[0],4)}, {vr(Qm[0],4)}, {vr(S[0],16)}")
    for i in range(NQ):
        for r in range(16): a(f"v_mov_b32 v{O[i]+r}, 0")
    for r in range(8,16): a(f"v_mov_b32 v{S[1]+r}, 0")
    if prof:
        a("s_memtime s[44:45]"); a("s_waitcnt lgkmcnt(0)")
    if prio: a("s_setprio 3")
    KD = 2 if NQ==1 else 1
    st={'next':N1}
    def chunk(kind):
        for t in range(8):
            for sub in range(NQ):
                u=t*NQ+sub
                cur=S[u%2]; nxt=S[(u+1)%2]
                pt,psub=divmod(u-1+8*NQ,NQ)
                nt,nsub=divmod(u+1,NQ)
                def e(i): a(f"v_exp_f32 v{cur+i}, v{cur+i}")
                a.c(f"--- tile {t} sub {sub}")
                e(0); e(1)
                a(f"v_smfmac_f32_32x32x32_bf16 {vr(O[psub],16)}, {vr(V[pt%2]+4,4)}, {vr(nxt+8,8)}, v{vIDX}")
                if sub==NQ-1: a("s_waitcnt lgkmcnt(0)")
                e(2); e(3)
                krb=Kr[(nt>>1)%2]+2*(nt&1)
                a(f"v_mfma_f32_32x32x8_bf16 {vr(nxt,16)}, {vr(krb,2)}, {vr(Qr[nsub],2)}, 0")
                e(4); e(5)
                a(f"v_mfma_f32_32x32x16_bf16 {vr(nxt,16)}, {vr(Km[nt%2],4)}, {vr(Qm[nsub],4)}, {vr(nxt,16)}")
                e(6); e(7); e(8); e(9)
                if sub==0:
                    kt=t+KD
                    if kt==8:
                        if kind==0:
                            a(f"s_waitcnt vmcnt({st['next']-steps_needed(2)})")
                            a("s_barrier")
                        if kind==1:
                            a("s_waitcnt vmcnt(0)")
                            a("s_barrier")
                            for ee in range(8):
                                a(f"buffer_load_ushort v{WT+ee}, v{vWA if ee<4 else vWB}, s[36:39], s34 offen offset:{(ee&3)*1280}")
                        a(f"v_add_u32 v{vKr}, {CHUNK}, v{vKr}")
                    a(f"s_mov_b64 exec, s[{MV}:{MV+1}]")
                    vt=t+1
                    voff = vt*1280 if vt<8 else CHUNK+(vt-8)*1280
                    a(f"ds_read_b128 {vr(V[vt%2],4)}, v{vV} offset:{voff}")
                    a(f"v_smfmac_f32_32x32x32_bf16 {vr(O[sub],16)}, {vr(V[t%2],4)}, {vr(cur,8)}, v{vIDX}")
                    a(f"ds_read_b128 {vr(V[vt%2]+4,4)}, v{vV} offset:{voff+640}")
                    if kt%2==0:
                        a(f"s_mov_b64 exec, s[{MLO}:{MLO+1}]")
                        j=kt%8
                        a(f"ds_read2_b64 {vr(Kr[(kt>>1)%2],4)}, v{vKr} offset0:{32*j} offset1:{32*j+32}")
                    a("s_mov_b64 exec, -1")
                    koff = kt*1024 if kt<8 else CHUNK+(kt-8)*1024
                    a(f"ds_read_b128 {vr(Km[kt%2],4)}, v{vKm} offset:{koff}")
                else:
                    a(f"v_smfmac_f32_32x32x32_bf16 {vr(O[sub],16)}, {vr(V[t%2],4)}, {vr(cur,8)}, v{vIDX}")
                    a("s_nop 0")
                e(10); e(11); e(12)
                if kind==0:
                    nd = 2 if (NSTEP-st['next']) > (8*NQ-u) else 1
                    for _ in range(nd):
                        if st['next']<NSTEP:
                            dma(st['next']); st['next']+=1
                e(13); e(14); e(15)
        a(f"v_add_u32 v{vKm}, {CHUNK}, v{vKm}")
        a(f"v_add_u32 v{vV}, {CHUNK}, v{vV}")
    a(f"s_cmp_lg_u32 s{sRETRY}, 0")
    a("s_cbranch_scc1 Lattn_loop")
    a.label("Lattn_peel")
    chunk(0)
    assert st['next']==NSTEP
    chunk(1)
    a(f"s_mov_b32 s{sCH}, 2")
    a(".p2align 6")
    a.label("Lattn_loop")
    chunk(2)
    a(f"s_add_u32 s{sCH}, s{sCH}, 1")
    if prio:
        a(f"s_cmp_lt_u32 s{sCH}, 5")
        a("s_cbranch_scc1 Lattn_loop")
        a("s_setprio 2")
        a(f"s_cmp_eq_u32 s{sCH}, 5")
        a("s_cbranch_scc1 Lattn_loop")
        a("s_setprio 1")
        a(f"s_cmp_eq_u32 s{sCH}, 6")
        a("s_cbranch_scc1 Lattn_loop")
        a("s_setprio 0")
    a(f"s_cmp_lt_u32 s{sCH}, 8")
    a("s_cbranch_scc1 Lattn_loop")
    a.label("Lattn_loopend")
    lastu=8*NQ-1
    a(f"v_smfmac_f32_32x32x32_bf16 {vr(O[NQ-1],16)}, {vr(V[7%2]+4,4)}, {vr(S[lastu%2]+8,8)}, v{vIDX}")
    a("s_waitcnt lgkmcnt(0)")
    if prof:
        a("s_memtime s[46:47]"); a("s_waitcnt lgkmcnt(0)")
    a(f"s_lshr_b32 s16, s{sHQ}, 1")
    a("s_mul_i32 s16, s16, 2560")
    a(f"s_mul_i32 s17, s{sQT}, 81920")
    a("s_add_u32 s16, s16, s17")
    a(f"s_add_u32 s16, s16, {WS_O}")
    a(f"s_and_b32 s17, s{sHQ}, 1")
    a("s_lshl_b32 s23, s17, 10")
    a("s_add_u32 s23, s23, s16")
    a("s_lshl_b32 s17, s17, 3")
    a("s_add_u32 s16, s16, s17")
    a("s_add_u32 s16, s16, 2048")
    a(f"v_mov_b32 v{vT}, 0x5d800000")
    a("s_mov_b64 s[30:31], -1")
    a("s_nop 3")
    for i in range(NQ):
        a(f"s_mov_b64 exec, s[{MHI}:{MHI+1}]")
        a(f"v_mov_b32 v{O[i]+12}, v{O[i]+8}")
        a("s_mov_b64 exec, -1")
        a(f"v_cmp_lt_f32 vcc, v{O[i]+12}, v{vT}")
        a("s_nop 1")
        a("s_and_b64 s[30:31], s[30:31], vcc")
    a("s_cmp_eq_u64 s[30:31], -1")
    a("s_cbranch_scc0 Lattn_fallback")
    a.label("Lattn_ok")
    for i in range(NQ):
        a(f"v_rcp_f32 v{vT}, v{O[i]+12}")
        a("s_nop 0")
        a(f"v_mul_f32 v{vT}, v{vT}, v{vG[i]}")
        for r in range(12): a(f"v_mul_f32 v{O[i]+r}, v{O[i]+r}, v{vT}")
        for r in range(6): a(f"v_cvt_pk_bf16_f32 v{S[i]+r}, v{O[i]+2*r}, v{O[i]+2*r+1}")
        a(f"buffer_store_dwordx4 {vr(S[i],4)}, v{vL16}, s[8:11], s23 offen")
        a(f"s_mov_b64 exec, s[{MLO}:{MLO+1}]")
        a(f"buffer_store_dwordx2 {vr(S[i]+4,2)}, v{vL16}, s[8:11], s16 offen")
        a("s_mov_b64 exec, -1")
        if i<NQ-1:
            a("s_add_u32 s23, s23, 81920")
            a("s_add_u32 s16, s16, 81920")
    a(f"s_cmp_ge_u32 s{sF}, 1600")
    a("s_cbranch_scc1 Lattn_nowt")
    a(f"s_lshl_b32 s16, s{sF}, 10")
    a(f"s_add_u32 s16, s16, {WS_WT}")
    a(f"s_waitcnt vmcnt({2*NQ})")
    for ee in range(4): a(f"v_lshl_or_b32 v{WT+ee}, v{WT+2*ee+1}, 16, v{WT+2*ee}")
    a(f"buffer_store_dwordx4 {vr(WT,4)}, v{vL16}, s[8:11], s16 offen")
    a.label("Lattn_nowt")
    if prof: prof_end(a,40,50,52,8,sW,NW,0,mids=(42,44,46))
    a.label("Lattn_end")
    a("s_endpgm")
    a.label("Lattn_fallback")
    a(f"s_cmp_lg_u32 s{sRETRY}, 0")
    a("s_cbranch_scc1 Lattn_ok")
    a(f"s_mov_b32 s{sRETRY}, 1")
    a(f"s_mov_b64 exec, s[{MHI}:{MHI+1}]")
    for i in range(NQ):
        a(f"v_mov_b32 v{Qr[i]}, 0")
    a("s_mov_b64 exec, -1")
    for i in range(NQ): a(f"v_mov_b32 v{vM[i]}, 0xff800000")
    a(f"s_mov_b32 s{sT}, 0")
    a.label("Lattn_mloop")
    a(f"s_lshr_b32 s23, s{sT}, 3")
    a(f"s_mul_i32 s23, s23, {CHUNK}")
    a(f"s_and_b32 s{sT2}, s{sT}, 7")
    a(f"s_lshl_b32 s30, s{sT2}, 10")
    a("s_add_u32 s30, s30, s23")
    a(f"s_lshl_b32 s31, s{sT2}, 8")
    a("s_add_u32 s31, s31, s23")
    a(f"v_add_u32 v{vT}, s30, v{vL16}")
    a(f"v_add_u32 v{vT2}, s31, v{vR8}")
    a(f"ds_read_b128 {vr(Km[0],4)}, v{vT}")
    a(f"s_mov_b64 exec, s[{MLO}:{MLO+1}]")
    a(f"ds_read_b64 {vr(Kr[0],2)}, v{vT2} offset:8192")
    a("s_mov_b64 exec, -1")
    a("s_waitcnt lgkmcnt(0)")
    for i in range(NQ):
        a(f"v_mfma_f32_32x32x8_bf16 {vr(S[i],16)}, {vr(Kr[0],2)}, {vr(Qr[i],2)}, 0")
        a(f"v_mfma_f32_32x32x16_bf16 {vr(S[i],16)}, {vr(Km[0],4)}, {vr(Qm[i],4)}, {vr(S[i],16)}")
    a("s_nop 15")
    for i in range(NQ):
        for r in range(0,16,2):
            a(f"v_max3_f32 v{vM[i]}, v{S[i]+r}, v{S[i]+r+1}, v{vM[i]}")
    a(f"s_add_u32 s{sT}, s{sT}, 1")
    a(f"s_cmp_lt_u32 s{sT}, 64")
    a("s_cbranch_scc1 Lattn_mloop")
    a("s_branch Lattn_start")
    txt=a.text()
    if var:
        head,rest=txt.split("Lattn_peel:",1)
        body,tail=rest.split("Lattn_loopend:",1)
        L=body.split("\n")
        if 'nosm' in var: L=[x for x in L if 'v_smfmac' not in x]
        if 'noqk' in var: L=[x for x in L if 'v_mfma' not in x]
        if 'noexp' in var: L=[x for x in L if 'v_exp' not in x]
        if 'nods' in var: L=[x for x in L if 'ds_read' not in x]
        txt=head+"Lattn_peel:"+"\n".join(L)+"Lattn_loopend:"+tail
        txt=txt.replace("s_cbranch_scc0 Lattn_fallback","s_nop 0",1)
    return txt, NV, 64*NW
```

```python
S_LEN=2048; D=640; H=32; DH=20
WS_Q  = 0
QH_BYTES = 81920
WS_KV = 64*QH_BYTES
KV_BYTES = 163840
WS_G  = WS_KV + 33*KV_BYTES
WS_O  = 0xB00000
WS_WT = WS_O + 64*81920
WS_END = WS_WT + 8*40*5120
CHUNK = 20480

class A:
    def __init__(s): s.l=[]
    def __call__(s,x): s.l.append("  "+x)
    def label(s,x): s.l.append(x+":")
    def c(s,x): s.l.append("  ; "+x)
    def text(s): return "\n".join(s.l)
def vr(a,n): return f"v[{a}:{a+n-1}]"
def sr(a,n): return f"s[{a}:{a+n-1}]"

def prof_start(a, c0, r0):
    a(f"s_memtime s[{c0}:{c0+1}]"); a(f"s_memrealtime s[{r0}:{r0+1}]")
def prof_end(a, c0, r0, t0, srd, sW, nw, base, mids=()):
    a("s_waitcnt vmcnt(0) lgkmcnt(0)")
    a(f"s_memtime s[{t0}:{t0+1}]"); a(f"s_memrealtime s[{t0+2}:{t0+3}]"); a("s_waitcnt lgkmcnt(0)")
    a(f"s_sub_u32 s{t0}, s{t0}, s{c0}")
    a(f"s_sub_u32 s{t0+2}, s{t0+2}, s{r0}")
    a("s_mov_b64 exec, -1")
    a(f"v_mov_b32 v16, s{t0}"); a(f"v_mov_b32 v17, s{t0+2}"); a(f"v_mov_b32 v18, s{r0}")
    for i in range(5):
        if i<len(mids):
            a(f"s_sub_u32 s{t0+1}, s{mids[i]}, s{c0}"); a(f"v_mov_b32 v{19+i}, s{t0+1}")
        else: a(f"v_mov_b32 v{19+i}, 0")
    a(f"s_mul_i32 s{t0}, s2, {nw}"); a(f"s_add_u32 s{t0}, s{t0}, s{sW}"); a(f"s_lshl_b32 s{t0}, s{t0}, 5")
    a(f"s_add_u32 s{t0}, s{t0}, {WS_END+base}")
    a(f"s_add_u32 s{srd+2}, s{srd+2}, 0x100000")
    a("v_mov_b32 v24, 0")
    a("s_mov_b64 exec, 1")
    a(f"buffer_store_dwordx4 v[16:19], v24, s[{srd}:{srd+3}], s{t0} offen")
    a(f"buffer_store_dwordx4 v[20:23], v24, s[{srd}:{srd+3}], s{t0} offen offset:16")
```

```python
from gen_common import *

def gen_out(prof=False, rot=1):
    a=A()
    SWS=8; SO=12
    sMB=16; sNB=17; sWv=18; sT=19; sT2=20; sOB=21; sWB=22
    vLane=1; vOo=2; vWo=3; vT=4; vT2=5; vQ=6; vI=7; vL16=8; vSt=9
    NKS=10
    def frag(j,i):
        idx=j*36+i*4
        if j<6: return ("v",16+idx)
        return ("a",80+(j-6)*36+i*4)
    def R(t,n): return f"{t[0]}[{t[1]}:{t[1]+n-1}]"
    a("s_cmp_ge_u32 s2, 256")
    a("s_cbranch_scc1 Lout_end")
    a("s_load_dwordx2 s[4:5], s[0:1], 88")
    a("s_load_dwordx2 s[6:7], s[0:1], 72")
    if prof: prof_start(a,64,66)
    a(f"v_and_b32 v{vLane}, 63, v0")
    a(f"v_lshrrev_b32 v{vT}, 6, v0")
    a(f"v_lshlrev_b32 v{vL16}, 4, v{vLane}")
    a(f"v_readfirstlane_b32 s{sWv}, v{vT}")
    a(f"v_lshrrev_b32 v{vQ}, 4, v{vLane}")
    a(f"v_and_b32 v{vI}, 15, v{vLane}")
    a(f"s_and_b32 s{sT}, s2, 7")
    a(f"s_lshr_b32 s{sT2}, s2, 3")
    a(f"s_lshr_b32 s{sMB}, s{sT}, 1")
    a(f"s_lshl_b32 s{sMB}, s{sMB}, 3")
    a(f"s_and_b32 s23, s{sT2}, 7")
    a(f"s_add_u32 s{sMB}, s{sMB}, s23")
    a(f"s_and_b32 s{sNB}, s{sT}, 1")
    a(f"s_lshl_b32 s{sNB}, s{sNB}, 2")
    a(f"s_lshr_b32 s{sT2}, s{sT2}, 3")
    a(f"s_add_u32 s{sNB}, s{sNB}, s{sT2}")
    a(f"v_lshlrev_b32 v{vOo}, 9, v{vQ}")
    a(f"v_lshl_add_u32 v{vOo}, v{vI}, 4, v{vOo}")
    a(f"s_mul_i32 s{sOB}, s{sMB}, {2*81920}")
    a(f"s_mul_i32 s{sT}, s{sWv}, {NKS*2048}")
    a(f"s_add_u32 s{sOB}, s{sOB}, s{sT}")
    a(f"s_add_u32 s{sOB}, s{sOB}, {WS_O}")
    a(f"s_add_u32 s24, s{sOB}, 81920")
    a(f"s_mul_i32 s{sWB}, s{sNB}, {40*5120}")
    a(f"s_mul_i32 s{sT}, s{sWv}, {NKS*5120}")
    a(f"s_add_u32 s{sWB}, s{sWB}, s{sT}")
    a(f"s_add_u32 s{sWB}, s{sWB}, {WS_WT}")
    a(f"s_and_b32 s26, s{sMB}, 7")
    a(f"s_and_b32 s27, s{sNB}, 3")
    a("s_mul_i32 s27, s27, 3")
    a("s_add_u32 s26, s26, s27")
    a("s_cmp_ge_u32 s26, 10")
    a("s_cselect_b32 s27, 10, 0")
    a("s_sub_u32 s26, s26, s27")
    if not rot: a("s_mov_b32 s26, 0")
    a("s_lshl_b32 s27, s26, 11")
    a(f"s_add_u32 s{sOB}, s{sOB}, s27")
    a("s_add_u32 s24, s24, s27")
    a("s_mul_i32 s27, s26, 5120")
    a(f"s_add_u32 s{sWB}, s{sWB}, s27")
    a(f"s_add_u32 s25, s{sWB}, 4096")
    a(f"s_mov_b32 s{SWS+2}, {WS_END}"); a(f"s_mov_b32 s{SWS+3}, 0x00020000")
    a(f"s_mov_b32 s{SO+2}, {2048*1280}"); a(f"s_mov_b32 s{SO+3}, 0x00020000")
    a("s_waitcnt lgkmcnt(0)")
    a(f"s_mov_b32 s{SWS}, s4"); a(f"s_mov_b32 s{SWS+1}, s5")
    a(f"s_mov_b32 s{SO}, s6"); a(f"s_mov_b32 s{SO+1}, s7")
    a("s_movk_i32 s28, 2048"); a("s_movk_i32 s29, 5120")
    def loads(j):
        for s in range(4):
            so = sOB if s<2 else 24
            a(f"buffer_load_dwordx4 {R(frag(j,s),4)}, v{vOo}, {sr(SWS,4)}, s{so} offen offset:{(s&1)*256}")
        for t in range(5):
            if t<4: a(f"buffer_load_dwordx4 {R(frag(j,4+t),4)}, v{vL16}, {sr(SWS,4)}, s{sWB} offen offset:{t*1024}")
            else: a(f"buffer_load_dwordx4 {R(frag(j,4+t),4)}, v{vL16}, {sr(SWS,4)}, s25 offen")
        if j<NKS-1:
            a("s_add_u32 s26, s26, 1")
            a("s_cmp_eq_u32 s26, 10")
            a(f"s_cselect_b32 s27, {-9*2048}, s28")
            a(f"s_add_u32 s{sOB}, s{sOB}, s27"); a("s_add_u32 s24, s24, s27")
            a("s_cmp_eq_u32 s26, 10")
            a(f"s_cselect_b32 s27, {-9*5120}, s29")
            a(f"s_add_u32 s{sWB}, s{sWB}, s27"); a("s_add_u32 s25, s25, s27")
    for j in range(7): loads(j)
    for j in range(NKS):
        a(f"s_waitcnt vmcnt({9*(min(NKS-1,j+6)-j)})")
        if prof and j==0: a("s_memtime s[68:69]")
        for s in range(4):
            for t in range(5):
                acc=(s*5+t)*4
                c = "0" if j==0 else f"a[{acc}:{acc+3}]"
                a(f"v_mfma_f32_16x16x32_bf16 a[{acc}:{acc+3}], {R(frag(j,4+t),4)}, {R(frag(j,s),4)}, {c}")
        if j+7<NKS: loads(j+7)
    a("s_nop 7")
    if prof: a("s_memtime s[70:71]")
    for s in range(4):
        a(f"s_sub_u32 s{sT}, s{sWv}, {s+1}")
        a(f"s_and_b32 s{sT}, s{sT}, 3")
        a(f"s_cmp_eq_u32 s{sT}, 3")
        a(f"s_cbranch_scc1 Lout_skip{s}")
        a(f"s_mul_i32 s{sT}, s{sT}, 5120")
        a(f"v_add_u32 v{vT}, s{sT}, v{vL16}")
        for t in range(5):
            acc=(s*5+t)*4
            a(f"ds_write_b128 v{vT}, a[{acc}:{acc+3}] offset:{s*15360+t*1024}")
        a(f"s_branch Lout_next{s}")
        a.label(f"Lout_skip{s}")
        for r in range(20): a(f"v_accvgpr_read_b32 v{16+r}, a{s*20+r}")
        a.label(f"Lout_next{s}")
    a(f"s_mul_i32 s{sT}, s{sWv}, 15360")
    a(f"v_add_u32 v{vT}, s{sT}, v{vL16}")
    a(f"s_lshl_b32 s{sT}, s{sMB}, 6")
    a(f"s_lshl_b32 s{sT2}, s{sWv}, 4")
    a(f"s_add_u32 s{sT}, s{sT}, s{sT2}")
    a(f"s_mul_i32 s{sT}, s{sT}, 1280")
    a(f"s_mul_i32 s{sT2}, s{sNB}, 160")
    a(f"s_add_u32 s{sT}, s{sT}, s{sT2}")
    a(f"v_mul_u32_u24 v{vSt}, 1280, v{vI}")
    a(f"v_lshl_add_u32 v{vT2}, v{vQ}, 3, v{vSt}")
    a(f"v_lshl_add_u32 v{vSt}, v{vQ}, 4, v{vSt}")
    a("s_waitcnt lgkmcnt(0)")
    a("s_barrier")
    for sl in range(3):
        for t in range(5):
            a(f"ds_read_b128 {vr(40+sl*20+t*4,4)}, v{vT} offset:{sl*5120+t*1024}")
    for sl in range(3):
        a(f"s_waitcnt lgkmcnt({10-5*sl})")
        for r in range(20): a(f"v_add_f32 v{16+r}, v{16+r}, v{40+sl*20+r}")
    for i in range(10): a(f"v_cvt_pk_bf16_f32 v{100+i}, v{16+2*i}, v{17+2*i}")
    a(f"buffer_store_dwordx4 v[100:103], v{vSt}, {sr(SO,4)}, s{sT} offen")
    a(f"buffer_store_dwordx4 v[104:107], v{vSt}, {sr(SO,4)}, s{sT} offen offset:64")
    a(f"buffer_store_dwordx2 v[108:109], v{vT2}, {sr(SO,4)}, s{sT} offen offset:128")
    if prof: prof_end(a,64,66,72,SWS,sWv,4,0x80000,mids=(68,70))
    a.label("Lout_end")
    a("s_endpgm")
    return a.text(), (256,256+224), 256, 256, 61440
```

```python
from gen_common import *
import struct
CQ=(20**-0.5)*1.4426950408889634
def fbits(x): return struct.unpack("<I",struct.pack("<f",x))[0]

def gen_proj(prof=False, rot=1, var=''):
    a=A()
    STG=40960; XO=0; WO=16384; EO=36864
    SX=8; SW=12; SE=16; SWS=20
    sMB=24; sNB=25; sWv=26; sLD=27; sKX=28; sKW=29; sKE=30; sStepW=31; sStepE=32; sBufD=33; sBufR=34; sIt=35
    sTT=36; sHS=37; sOm=38; sOr=39; sScale=40; sM0a=41
    sT=46; sT2=47; sT3=48
    vLane=1; vD=2
    vXb=7; vXa=8
    vWb=12
    vWa=15
    vT=18; vT2=19; vT3=20; vN=21; vH=22; vOm=23; vOr=24; vT4=25; vT5=26
    ACC=[32,48,64]
    FX=[80,84,88,92]
    FW=[[96+12*f+4*i for i in range(3)] for f in range(4)]
    NV=144
    a("s_cmp_ge_u32 s2, 256")
    a("s_cbranch_scc1 Lproj_end")
    a("s_load_dwordx4 s[52:55], s[0:1], 0")
    a("s_load_dwordx4 s[56:59], s[0:1], 16")
    a("s_load_dwordx2 s[60:61], s[0:1], 48")
    a("s_load_dwordx2 s[62:63], s[0:1], 64")
    a("s_load_dwordx2 s[4:5], s[0:1], 88")
    if prof: prof_start(a,64,66)
    a(f"v_and_b32 v{vLane}, 63, v0")
    a(f"v_lshrrev_b32 v{vT}, 6, v0")
    a(f"v_and_b32 v{vN}, 31, v0")
    a(f"v_readfirstlane_b32 s{sWv}, v{vT}")
    a(f"v_lshrrev_b32 v{vH}, 5, v{vLane}")
    a(f"s_and_b32 s{sT}, s2, 7")
    a(f"s_lshr_b32 s{sT2}, s2, 3")
    a(f"s_lshr_b32 s{sMB}, s{sT}, 1")
    a(f"s_lshl_b32 s{sMB}, s{sMB}, 2")
    a(f"s_and_b32 s{sT3}, s{sT2}, 3")
    a(f"s_add_u32 s{sMB}, s{sMB}, s{sT3}")
    a(f"s_and_b32 s{sNB}, s{sT}, 1")
    a(f"s_lshl_b32 s{sNB}, s{sNB}, 3")
    a(f"s_lshr_b32 s{sT2}, s{sT2}, 2")
    a(f"s_add_u32 s{sNB}, s{sNB}, s{sT2}")
    a(f"s_cmp_lt_u32 s{sNB}, 4")
    a(f"s_movk_i32 s{sLD}, 3840"); a(f"s_cselect_b32 s{sLD}, 1280, s{sLD}")
    a(f"s_cselect_b32 s{sT}, 0, 4")
    a(f"s_sub_u32 s{sT}, s{sNB}, s{sT}")
    a(f"s_mul_i32 s{sKW}, s{sT}, 320")
    a(f"s_lshl_b32 s{sStepW}, s{sLD}, 6")
    a(f"s_mul_i32 s{sKX}, s{sMB}, {128*1280}")
    a(f"s_mov_b32 s{sKE}, 0")
    a(f"s_lshl_b32 s{sT}, s{sWv}, 4")
    a(f"v_lshrrev_b32 v{vT}, 3, v{vLane}")
    a(f"v_add_u32 v{vT}, s{sT}, v{vT}")
    a(f"v_and_b32 v{vT2}, 7, v{vLane}")
    for e in range(2):
        if e: a(f"v_add_u32 v{vT}, 8, v{vT}")
        a(f"v_bfe_u32 v{vT3}, v{vT}, 1, 3")
        a(f"v_xor_b32 v{vT3}, v{vT3}, v{vT2}")
        a(f"v_lshlrev_b32 v{vT3}, 4, v{vT3}")
        a(f"v_mul_u32_u24 v{vD+e}, 1280, v{vT}")
        a(f"v_add_u32 v{vD+e}, v{vD+e}, v{vT3}")
    a(f"s_lshl_b32 s{sM0a}, s{sWv}, 11")
    a(f"s_add_u32 s{sM0a+1}, s{sM0a}, 1024")
    a(f"s_mul_i32 s{sT}, s{sWv}, 3")
    a(f"s_lshl_b32 s{sT2}, s{sWv}, 1")
    a(f"s_add_u32 s{sT2}, s{sT2}, 4")
    a(f"s_cmp_lt_u32 s{sWv}, 4")
    a(f"s_cselect_b32 s{sT}, s{sT}, s{sT2}")
    a(f"s_lshl_b32 s{sT2}, s{sT}, 6")
    a(f"v_add_u32 v{vT}, s{sT2}, v{vLane}")
    a(f"s_lshl_b32 s{sT}, s{sT}, 10")
    for e in range(3):
        if e: a(f"v_add_u32 v{vT}, 64, v{vT}")
        a(f"v_mul_u32_u24 v{vT2}, 3277, v{vT}")
        a(f"v_lshrrev_b32 v{vT2}, 16, v{vT2}")
        a(f"v_mul_u32_u24 v{vT3}, 20, v{vT2}")
        a(f"v_sub_u32 v{vT3}, v{vT}, v{vT3}")
        a(f"v_lshlrev_b32 v{vT3}, 4, v{vT3}")
        a(f"v_mul_lo_u32 v{vD+2+e}, v{vT2}, s{sLD}")
        a(f"v_add_u32 v{vD+2+e}, v{vD+2+e}, v{vT3}")
        a(f"s_add_u32 s{sM0a+2+e}, s{sT}, {WO+1024*e}")
    a(f"s_cmp_lt_u32 s{sWv}, 4")
    a("s_cbranch_scc1 Lproj_noE")
    a(f"s_sub_u32 s{sT}, s{sWv}, 4")
    a(f"s_lshl_b32 s{sT}, s{sT}, 10")
    a(f"v_lshlrev_b32 v{vD+4}, 4, v{vLane}")
    a(f"v_add_u32 v{vD+4}, s{sT}, v{vD+4}")
    a(f"s_add_u32 s{sM0a+4}, s{sT}, {EO}")
    a(f"s_cmp_eq_u32 s{sNB}, 2")
    a(f"s_movk_i32 s{sT}, 2560"); a(f"s_cselect_b32 s{sT}, 128, s{sT}")
    a(f"v_cmp_le_u32 vcc, s{sT}, v{vD+4}")
    a(f"v_mov_b32 v{vT}, 0x40000000")
    a("s_nop 0")
    a(f"v_cndmask_b32 v{vD+4}, v{vD+4}, v{vT}, vcc")
    a.label("Lproj_noE")
    a(f"s_cmp_eq_u32 s{sNB}, 2")
    a(f"s_movk_i32 s{sStepE}, 2560"); a(f"s_cselect_b32 s{sStepE}, 128, s{sStepE}")
    if prof: a("s_memtime s[76:77]")
    a("s_waitcnt lgkmcnt(0)")
    if prof: a("s_memtime s[78:79]")
    a(f"s_mov_b32 s{SX}, s52"); a(f"s_mov_b32 s{SX+1}, s53"); a(f"s_mov_b32 s{SX+2}, {2048*1280}"); a(f"s_mov_b32 s{SX+3}, 0x00020000")
    a(f"s_cmp_lt_u32 s{sNB}, 4")
    a(f"s_cselect_b32 s{SW}, s54, s60"); a(f"s_cselect_b32 s{SW+1}, s55, s61")
    a(f"s_mov_b32 s{SW+2}, {640*3840}"); a(f"s_cselect_b32 s{SW+2}, {640*1280}, s{SW+2}"); a(f"s_mov_b32 s{SW+3}, 0x00020000")
    a(f"s_cmp_eq_u32 s{sNB}, 1")
    a(f"s_cselect_b32 s{SE}, s58, s56"); a(f"s_cselect_b32 s{SE+1}, s59, s57")
    a(f"s_mov_b32 s{SE+2}, 25600")
    a(f"s_cmp_eq_u32 s{sNB}, 2")
    a(f"s_cselect_b32 s{SE}, s62, s{SE}"); a(f"s_cselect_b32 s{SE+1}, s63, s{SE+1}")
    a(f"s_cselect_b32 s{SE+2}, 1280, s{SE+2}")
    a(f"s_cmp_gt_u32 s{sNB}, 2")
    a(f"s_cselect_b32 s{SE+2}, 0, s{SE+2}")
    a(f"s_mov_b32 s{SE+3}, 0x00020000")
    a(f"s_mov_b32 s{SWS}, s4"); a(f"s_mov_b32 s{SWS+1}, s5"); a(f"s_mov_b32 s{SWS+2}, {WS_END}"); a(f"s_mov_b32 s{SWS+3}, 0x00020000")
    a(f"s_mov_b32 s{sBufD}, 0")
    sRX=6; sRW=7
    a(f"s_and_b32 s{sRX}, s{sNB}, 7")
    a(f"s_and_b32 s{sT}, s{sMB}, 3")
    a(f"s_mul_i32 s{sT}, s{sT}, 3")
    a(f"s_add_u32 s{sRX}, s{sRX}, s{sT}")
    a(f"s_cmp_ge_u32 s{sRX}, 10")
    a(f"s_cselect_b32 s{sT}, 10, 0")
    a(f"s_sub_u32 s{sRX}, s{sRX}, s{sT}")
    if not rot: a(f"s_mov_b32 s{sRX}, 0")
    a(f"s_mov_b32 s{sRW}, s{sRX}")
    a(f"s_lshl_b32 s{sT}, s{sRX}, 7")
    a(f"s_add_u32 s{sKX}, s{sKX}, s{sT}")
    a(f"s_mul_i32 s{sT}, s{sRX}, s{sStepW}")
    a(f"s_add_u32 s{sKW}, s{sKW}, s{sT}")
    a(f"s_mul_i32 s{sKE}, s{sRX}, s{sStepE}")
    a(f"s_mul_i32 s51, s{sStepW}, -9")
    a(f"s_mul_i32 s3, s{sStepE}, -9")
    def dma(g,e):
        a(f"s_add_u32 m0, s{sM0a+e}, s{sBufD}")
        if e<2: srd,so=SX,sKX
        elif e<4 or g==0: srd,so=SW,sKW
        else: srd,so=SE,sKE
        if e==1:
            a(f"s_add_u32 s{sRX}, s{sRX}, 1")
        elif e==4:
            a(f"s_add_u32 s{sRW}, s{sRW}, 1")
        else: a("s_nop 0")
        a(f"buffer_load_dwordx4 v{vD+e}, {sr(srd,4)}, s{so} offen lds")
        if e==1:
            a(f"s_cmp_eq_u32 s{sRX}, 10")
            a(f"s_cselect_b32 s{sT}, {-9*128}, s{sC128}")
            a(f"s_cselect_b32 s{sRX}, 0, s{sRX}")
            a(f"s_add_u32 s{sKX}, s{sKX}, s{sT}")
        if e==4:
            a(f"s_cmp_eq_u32 s{sRW}, 10")
            a(f"s_cselect_b32 s{sT}, s51, s{sStepW}")
            a(f"s_cselect_b32 s{sT2}, s3, s{sStepE}")
            a(f"s_cselect_b32 s{sRW}, 0, s{sRW}")
            a(f"s_add_u32 s{sKW}, s{sKW}, s{sT}")
            if g==1: a(f"s_add_u32 s{sKE}, s{sKE}, s{sT2}")
            a(f"s_add_u32 s{sBufD}, s{sBufD}, {STG}")
            a(f"s_cmp_eq_u32 s{sBufD}, {4*STG}")
            a(f"s_cselect_b32 s{sBufD}, 0, s{sBufD}")
    sC128=52
    a(f"s_movk_i32 s{sC128}, 128")
    a(f"s_cmp_lt_u32 s{sWv}, 4")
    a("s_cbranch_scc0 Lproj_pre1")
    for g in range(2):
        if g==1: a.label("Lproj_pre1")
        for e in range(5): dma(g,e)
        if g==0: a("s_branch Lproj_pre2")
    a.label("Lproj_pre2")
    a(f"s_and_b32 s{sT}, s{sWv}, 3")
    a(f"s_lshl_b32 s{sTT}, s{sMB}, 2")
    a(f"s_add_u32 s{sTT}, s{sTT}, s{sT}")
    a(f"s_lshl_b32 s{sT}, s{sT}, 12")
    a(f"v_bfe_u32 v{vT}, v{vN}, 1, 3")
    a(f"v_xor_b32 v{vT}, v{vT}, v{vH}")
    a(f"v_lshlrev_b32 v{vT}, 4, v{vT}")
    a(f"v_lshlrev_b32 v{vXb}, 7, v{vN}")
    a(f"v_add_u32 v{vXb}, v{vXb}, v{vT}")
    a(f"v_add_u32 v{vXb}, s{sT}, v{vXb}")
    a(f"v_bfe_u32 v{vT4}, v{vLane}, 2, 2")
    a(f"v_lshl_add_u32 v{vT4}, v{vH}, 3, v{vT4}")
    a(f"v_bfe_u32 v{vT5}, v{vLane}, 4, 1")
    a(f"v_and_b32 v{vT}, 3, v{vLane}")
    a(f"v_lshl_add_u32 v{vT5}, v{vT5}, 2, v{vT}")
    a(f"s_cmp_lt_u32 s{sNB}, 8")
    a(f"s_mov_b32 s{sHS}, {KV_BYTES}"); a(f"s_cselect_b32 s{sHS}, {QH_BYTES}, s{sHS}")
    a(f"s_cselect_b32 s{sScale}, {fbits(CQ)}, 1.0")
    a(f"s_lshr_b32 s{sT}, s{sTT}, 3")
    a(f"s_mul_i32 s{sT}, s{sT}, {CHUNK}")
    a(f"s_add_u32 s49, s{sT}, {WS_KV}")
    a(f"s_and_b32 s50, s{sTT}, 7")
    a(f"v_and_b32 v{vT}, 0x13, v{vN}")
    a(f"v_and_b32 v{vT2}, 4, v{vN}")
    a(f"v_lshl_or_b32 v{vT}, v{vT2}, 1, v{vT}")
    a(f"v_and_b32 v{vT2}, 8, v{vN}")
    a(f"v_lshrrev_b32 v{vT2}, 1, v{vT2}")
    a(f"v_or_b32 v27, v{vT}, v{vT2}")
    a(f"s_mov_b32 s{sBufR}, 0")
    a(f"s_mov_b32 s{sIt}, 0")
    for i in range(48): a(f"v_mov_b32 v{ACC[0]+i}, 0")
    a(f"s_cmp_lt_u32 s{sWv}, 4")
    a("s_cbranch_scc0 Lproj_g1")
    a(f"s_cmp_ge_u32 s{sNB}, 12")
    a("s_cbranch_scc1 Lproj_V0")
    a("s_branch Lproj_Q0")
    a.label("Lproj_g1")
    a(f"s_cmp_ge_u32 s{sNB}, 12")
    a("s_cbranch_scc1 Lproj_V1")
    a(f"s_cmp_eq_u32 s{sNB}, 0")
    a("s_cbranch_scc1 Lproj_Q1k")
    a(f"s_cmp_eq_u32 s{sNB}, 1")
    a("s_cbranch_scc1 Lproj_Q1v")
    a(f"s_cmp_eq_u32 s{sNB}, 2")
    a("s_cbranch_scc1 Lproj_Q1g")
    a("s_branch Lproj_Q1")

    def path(name,g,typ,extra):
        tiles=[0,1,2] if g==0 else [3,4]
        kinds=[(typ,t) for t in tiles]
        if extra: kinds.append((extra,5))
        nt=len(kinds)
        a.label(name)
        for i,(k,t) in enumerate(kinds):
            d=vWb+i
            if k=='Q' and t<4:
                a(f"v_lshrrev_b32 v{vT}, 2, v{vT5}")
                a(f"v_mul_u32_u24 v{vT}, 20, v{vT}")
                a(f"v_and_b32 v{vT2}, 1, v{vT5}")
                a(f"v_lshl_add_u32 v{vT}, v{vT2}, 1, v{vT}")
                a(f"v_bfe_u32 v{vT2}, v{vT5}, 1, 1")
                a(f"v_add3_u32 v{vT}, v{vT}, v{vT2}, {5*t}")
            elif k=='Q':
                a(f"v_mul_u32_u24 v{vT}, 5, v{vT5}")
                a(f"v_add_u32 v{vT}, 4, v{vT}")
            elif k=='V':
                a(f"v_add_u32 v{vT}, {8*t}, v{vT5}")
            elif k=='k':
                a(f"v_and_b32 v{vT2}, 1, v{vT5}")
                a(f"v_lshlrev_b32 v{vT}, 1, v{vT2}")
                a(f"v_bfe_u32 v{vT2}, v{vT5}, 1, 1")
                a(f"v_add_u32 v{vT}, v{vT}, v{vT2}")
                a(f"v_cmp_lt_u32 vcc, 3, v{vT5}")
                a("s_nop 1")
                a(f"v_cndmask_b32 v{vT}, v{vT}, 4, vcc")
            elif k=='v':
                a(f"v_min_u32 v{vT}, 4, v{vT5}")
            if k in 'QV':
                a(f"v_mul_u32_u24 v{d}, 320, v{vT4}")
                a(f"v_lshl_add_u32 v{d}, v{vT}, 3, v{d}")
                a(f"v_add_u32 v{d}, {WO}, v{d}")
            elif k in 'kv':
                a(f"v_mul_u32_u24 v{d}, 40, v{vT4}")
                a(f"v_lshl_add_u32 v{d}, v{vT}, 3, v{d}")
                a(f"v_add_u32 v{d}, {EO}, v{d}")
            else:
                a(f"v_lshlrev_b32 v{d}, 4, v{vH}")
                a(f"v_add_u32 v{d}, {EO}, v{d}")
        def addr_update():
            a(f"v_add_u32 v{vXa}, s{sBufR}, v{vXb}")
            for i in range(nt): a(f"v_add_u32 v{vWa+i}, s{sBufR}, v{vWb+i}")
            for ks in range(1,4): a(f"v_xor_b32 v{vXa+ks}, {32*ks}, v{vXa}")
            a(f"s_add_u32 s{sBufR}, s{sBufR}, {STG}")
            a(f"s_cmp_eq_u32 s{sBufR}, {4*STG}")
            a(f"s_cselect_b32 s{sBufR}, 0, s{sBufR}")
        def nreads():
            return 1+sum(1 if k=='g' else 2 for k,t in kinds)
        def reads(ks,f):
            r=[f"ds_read_b128 {vr(FX[f],4)}, v{vXa+ks}"]
            for i,(k,t) in enumerate(kinds):
                if k in 'QV':
                    r.append(f"ds_read_b64_tr_b16 {vr(FW[f][i],2)}, v{vWa+i} offset:{5120*ks}")
                    r.append(f"ds_read_b64_tr_b16 {vr(FW[f][i]+2,2)}, v{vWa+i} offset:{5120*ks+1280}")
                elif k in 'kv':
                    r.append(f"ds_read_b64_tr_b16 {vr(FW[f][i],2)}, v{vWa+i} offset:{640*ks}")
                    r.append(f"ds_read_b64_tr_b16 {vr(FW[f][i]+2,2)}, v{vWa+i} offset:{640*ks+160}")
                else:
                    r.append(f"ds_read_b128 {vr(FW[f][i],4)}, v{vWa+i} offset:{32*ks}")
            return r
        def mfmas(f):
            r=[]
            for i,(k,t) in enumerate(kinds):
                if k in 'Vv': A_,B_=FX[f],FW[f][i]
                else: A_,B_=FW[f][i],FX[f]
                r.append(f"v_mfma_f32_32x32x16_bf16 {vr(ACC[i],16)}, {vr(A_,4)}, {vr(B_,4)}, {vr(ACC[i],16)}")
            return r
        def cap(fn,*args):
            n=len(a.l); fn(*args); r=[x.strip() for x in a.l[n:]]; del a.l[n:]; return r
        def inter(ms,fill):
            per=-(-len(fill)//len(ms))
            for i,m in enumerate(ms):
                a(m)
                for x in fill[i*per:(i+1)*per]: a(x)
        nr=nreads()
        addr_update()
        for e in range(5): dma(g,e)
        dma(g,0); dma(g,1)
        if prof: a("s_memtime s[80:81]")
        a("s_waitcnt vmcnt(7)")
        a("s_barrier")
        if prof: a("s_memtime s[68:69]"); a("s_waitcnt lgkmcnt(0)")
        for x in reads(0,0)+reads(1,1): a(x)
        a.label(name+"_loop")
        a(f"s_waitcnt lgkmcnt({nr})")
        inter(mfmas(0), reads(2,2)+cap(dma,g,2))
        a(f"s_waitcnt lgkmcnt({nr})")
        inter(mfmas(1), reads(3,3)+cap(dma,g,3)+cap(dma,g,4))
        a(f"s_waitcnt lgkmcnt({nr})")
        m2=mfmas(2)
        a(m2[0])
        a(f"s_cmp_lt_u32 s{sIt}, 7")
        a(f"s_cselect_b32 s{SX+2}, s{SX+2}, 0")
        a(f"s_cselect_b32 s{SW+2}, s{SW+2}, 0")
        a(f"s_cselect_b32 s{SE+2}, s{SE+2}, 0")
        addr_update()
        a("s_waitcnt vmcnt(5) lgkmcnt(0)")
        a("s_barrier")
        inter(m2[1:], reads(0,0)+cap(dma,g,0))
        inter(mfmas(3), reads(1,1)+cap(dma,g,1))
        a(f"s_add_u32 s{sIt}, s{sIt}, 1")
        a(f"s_cmp_lt_u32 s{sIt}, 10")
        a(f"s_cbranch_scc1 {name}_loop")
        a("s_nop 7")
        if prof: a("s_memtime s[70:71]")
        a("s_waitcnt lgkmcnt(0)")
        TMP=FX[0]
        if typ=='Q':
            a(f"s_cmp_lt_u32 s{sNB}, 8")
            a(f"s_cselect_b64 vcc, -1, 0")
            a(f"v_cndmask_b32 v{vT}, v27, v{vN}, vcc")
            a(f"v_lshlrev_b32 v{vOm}, 9, v{vH}")
            a(f"v_lshl_add_u32 v{vOm}, v{vT}, 4, v{vOm}")
            a(f"v_mul_lo_u32 v{vOr}, v{vH}, s{sHS}")
            a(f"v_lshl_add_u32 v{vOr}, v{vT}, 3, v{vOr}")
            a(f"s_mul_i32 s{sT}, s{sNB}, {8*QH_BYTES}")
            a(f"s_lshl_b32 s{sT2}, s{sTT}, 10")
            a(f"s_add_u32 s{sOm}, s{sT}, s{sT2}")
            a(f"s_lshl_b32 s{sT2}, s{sTT}, 8")
            a(f"s_add_u32 s{sOr}, s{sT}, s{sT2}")
            a(f"s_add_u32 s{sOr}, s{sOr}, 65536")
            a(f"s_cmp_lt_u32 s{sNB}, 8")
            a(f"s_cbranch_scc1 {name}_isq")
            a(f"s_sub_u32 s{sT}, s{sNB}, 8")
            a(f"s_mul_i32 s{sT}, s{sT}, {8*KV_BYTES}")
            a(f"s_add_u32 s{sT}, s{sT}, s49")
            a(f"s_lshl_b32 s{sT2}, s50, 10")
            a(f"s_add_u32 s{sOm}, s{sT}, s{sT2}")
            a(f"s_lshl_b32 s{sT2}, s50, 8")
            a(f"s_add_u32 s{sOr}, s{sT}, s{sT2}")
            a(f"s_add_u32 s{sOr}, s{sOr}, 8192")
            a.label(name+"_isq")
            a(f"v_mov_b32 v{vT3}, s{sScale}")
            a("s_nop 4")
        else:
            a("s_nop 15")
        tp=TMP
        for i,(k,t) in enumerate(kinds):
            acc=ACC[i]
            if k=='Q':
                for r in range(16): a(f"v_mul_f32 v{acc+r}, v{acc+r}, v{vT3}")
            if k!='g':
                for r in range(8): a(f"v_cvt_pk_bf16_f32 v{tp+r}, v{acc+2*r}, v{acc+2*r+1}")
            if k=='Q' and t<4:
                for hh in range(2):
                    a(f"s_mul_i32 s{sT}, s{sHS}, {t+4*hh}")
                    a(f"s_add_u32 s{sT}, s{sT}, s{sOm}")
                    a(f"buffer_store_dwordx4 {vr(tp+4*hh,4)}, v{vOm}, {sr(SWS,4)}, s{sT} offen")
            elif k=='Q':
                for rg in range(4):
                    a(f"s_mul_i32 s{sT}, s{sHS}, {2*rg}")
                    a(f"s_add_u32 s{sT}, s{sT}, s{sOr}")
                    a(f"buffer_store_dwordx2 {vr(tp+2*rg,2)}, v{vOr}, {sr(SWS,4)}, s{sT} offen")
            elif k in 'Vv':
                if k=='V':
                    a(f"v_add_u32 v{vT}, {32*t}, v{vN}")
                    a(f"v_mul_u32_u24 v{vT2}, 205, v{vT}")
                    a(f"v_lshrrev_b32 v{vT2}, 12, v{vT2}")
                    a(f"v_mul_u32_u24 v{vT4}, 20, v{vT2}")
                    a(f"v_sub_u32 v{vT}, v{vT}, v{vT4}")
                else:
                    a(f"v_mov_b32 v{vT}, v{vN}")
                a(f"v_and_b32 v{vT4}, 0x13, v{vT}")
                a(f"v_and_b32 v{vT5}, 4, v{vT}")
                a(f"v_lshl_or_b32 v{vT4}, v{vT5}, 1, v{vT4}")
                a(f"v_and_b32 v{vT5}, 8, v{vT}")
                a(f"v_lshrrev_b32 v{vT5}, 1, v{vT5}")
                a(f"v_or_b32 v{vT4}, v{vT4}, v{vT5}")
                a(f"v_mul_u32_u24 v{vT5}, 320, v{vH}")
                a(f"v_lshl_add_u32 v{vT4}, v{vT4}, 4, v{vT5}")
                if k=='V':
                    a(f"s_mov_b32 s{sT}, {KV_BYTES}")
                    a(f"v_mul_lo_u32 v{vT2}, v{vT2}, s{sT}")
                    a(f"v_add_u32 v{vT4}, v{vT4}, v{vT2}")
                    a(f"s_sub_u32 s{sT}, s{sNB}, 12")
                    a(f"s_mul_i32 s{sT}, s{sT}, {8*KV_BYTES}")
                else:
                    a(f"s_mov_b32 s{sT}, {32*KV_BYTES}")
                    a(f"v_cmp_gt_u32 vcc, 20, v{vN}")
                    a("s_nop 1")
                    a("s_and_b64 exec, exec, vcc")
                a(f"s_add_u32 s{sT}, s{sT}, s49")
                a(f"s_mul_i32 s{sT2}, s50, 1280")
                a(f"s_add_u32 s{sT}, s{sT}, s{sT2}")
                a(f"s_add_u32 s{sT}, s{sT}, 10240")
                a(f"buffer_store_dwordx4 {vr(tp,4)}, v{vT4}, {sr(SWS,4)}, s{sT} offen")
                a(f"buffer_store_dwordx4 {vr(tp+4,4)}, v{vT4}, {sr(SWS,4)}, s{sT} offen offset:640")
            elif k=='k':
                a(f"v_lshlrev_b32 v{vT}, 9, v{vH}")
                a(f"v_lshl_add_u32 v{vT}, v27, 4, v{vT}")
                a(f"v_lshlrev_b32 v{vT2}, 3, v27")
                a(f"s_add_u32 s{sT}, s49, {32*KV_BYTES}")
                a(f"s_lshl_b32 s{sT2}, s50, 10")
                a(f"s_add_u32 s{sT2}, s{sT2}, s{sT}")
                a(f"buffer_store_dwordx4 {vr(tp,4)}, v{vT}, {sr(SWS,4)}, s{sT2} offen")
                a(f"s_lshl_b32 s{sT2}, s50, 8")
                a(f"s_add_u32 s{sT2}, s{sT2}, s{sT}")
                a(f"s_add_u32 s{sT2}, s{sT2}, 8192")
                a("s_mov_b32 exec_hi, 0")
                a(f"buffer_store_dwordx2 {vr(tp+4,2)}, v{vT2}, {sr(SWS,4)}, s{sT2} offen")
            elif k=='g':
                a(f"v_cvt_pk_bf16_f32 v{vT}, v{acc}, v{acc}")
                a(f"v_lshlrev_b32 v{vT}, 16, v{vT}")
                a(f"v_mul_f32 v{vT}, 0xbfb8aa3b, v{vT}")
                a(f"v_exp_f32 v{vT}, v{vT}")
                a("s_nop 0")
                a(f"v_add_f32 v{vT}, 1.0, v{vT}")
                a(f"v_rcp_f32 v{vT}, v{vT}")
                a("s_nop 0")
                a(f"v_cvt_pk_bf16_f32 v{vT}, v{vT}, v{vT}")
                a(f"v_lshlrev_b32 v{vT}, 16, v{vT}")
                a(f"v_sub_f32 v{vT2}, 1.0, v{vT}")
                a(f"v_cvt_pk_bf16_f32 v{vT2}, v{vT2}, v{vT2}")
                a(f"v_lshlrev_b32 v{vT2}, 16, v{vT2}")
                a(f"v_lshlrev_b32 v{vT4}, 2, v{vN}")
                a(f"s_lshl_b32 s{sT}, s{sTT}, 7")
                a(f"s_add_u32 s{sT}, s{sT}, {WS_G}")
                a(f"s_add_u32 s{sT2}, s{sT}, 8192")
                a("s_mov_b32 exec_hi, 0")
                a(f"buffer_store_dword v{vT}, v{vT4}, {sr(SWS,4)}, s{sT} offen")
                a(f"buffer_store_dword v{vT2}, v{vT4}, {sr(SWS,4)}, s{sT2} offen")
            tp+=8
        if prof: prof_end(a,64,66,72,SWS,sWv,8,0x40000,mids=(76,78,80,68,70))
        a("s_endpgm")
    path("Lproj_Q0",0,'Q',None)
    path("Lproj_V0",0,'V',None)
    path("Lproj_Q1",1,'Q',None)
    path("Lproj_V1",1,'V',None)
    path("Lproj_Q1k",1,'Q','k')
    path("Lproj_Q1v",1,'Q','v')
    path("Lproj_Q1g",1,'Q','g')
    a.label("Lproj_end")
    a("s_endpgm")
    txt=a.text()
    L=txt.split("\n")
    if 'nomf' in var: L=[x for x in L if 'v_mfma' not in x]
    if 'nord' in var: L=[x for x in L if 'ds_read' not in x]
    if 'nodma' in var: L=[x for x in L if ' lds' not in x]
    txt="\n".join(L)
    return txt, NV, 256, 512, 4*STG
```

```python
import sys, argparse
from gen_common import *
from gen_attn import gen_attn
HDR=open('gated_mix__grouped_kv_mqa__mha_block__prompt.s.ref').read().split('; Override launch')[0]

def kd(name,nv,ns=96):
    if isinstance(nv,tuple): acc,nv=nv
    else: acc=(nv+3)//4*4
    return f""".p2align 6
.amdhsa_kernel {name}
  .amdhsa_next_free_vgpr {nv}
  .amdhsa_next_free_sgpr {ns}
  .amdhsa_accum_offset {acc}
  .amdhsa_group_segment_fixed_size 0
  .amdhsa_kernarg_size 96
  .amdhsa_user_sgpr_count 2
  .amdhsa_user_sgpr_kernarg_segment_ptr 1
  .amdhsa_system_sgpr_workgroup_id_x 1
.end_amdhsa_kernel
"""
def build(kernels):
    o=HDR
    for n,t,nv,g,b,l in kernels:
        o+=f"; @launch kernel={n} grid=({g},1,1) block=({b},1,1) lds={l}\n"
    o+='.amdgcn_target "amdgcn-amd-amdhsa--gfx950"\n.text\n'
    for n,t,nv,g,b,l in kernels:
        o+=f".globl {n}\n.p2align 8\n.type {n},@function\n{n}:\n{t}\n"
    o+='.section .rodata,"a"\n'
    for n,t,nv,g,b,l in kernels:
        o+=kd(n,nv)
    return o
if __name__=="__main__":
    ap=argparse.ArgumentParser()
    ap.add_argument("--nq",type=int,default=1)
    ap.add_argument("--only",default="")
    ap.add_argument("--prof",action="store_true")
    ap.add_argument("--var",default="")
    ap.add_argument("--st",default="")
    ap.add_argument("--rot",type=int,default=1)
    ap.add_argument("--prio",type=int,default=1)
    ap.add_argument("--zrows",type=int,default=1)
    ap.add_argument("-o",default="gated_mix__grouped_kv_mqa__mha_block__prompt.s")
    args=ap.parse_args()
    ks=[]
    if args.only in ("","proj"):
        try:
            from gen_proj import gen_proj
            t,nv,g,b,l=gen_proj(prof=args.prof,rot=args.rot,var=args.var); ks.append(("proj_kernel",t,nv,g,b,l))
        except ImportError: pass
    if args.only in ("","attn"):
        t,nv,b=gen_attn(args.nq,prof=args.prof,var=args.var,prio=args.prio,zrows=args.zrows); ks.append(("attn_kernel",t,nv,256,b,163840))
    if args.only in ("","out"):
        try:
            from gen_out import gen_out
            t,nv,g,b,l=gen_out(prof=args.prof,rot=args.rot); ks.append(("out_kernel",t,nv,g,b,l))
        except ImportError: pass
    if args.st:
        import re
        ks=[(n,"\n".join((x+" "+args.st.replace("_"," ")) if x.strip().startswith("buffer_store") else x for x in t.split("\n")),nv,g,b,l) for n,t,nv,g,b,l in ks]
    open(args.o,"w").write(build(ks))
```

```python
import sys, argparse
from gen_common import *
from gen_attn import gen_attn
HDR=open('gated_mix__grouped_kv_mqa__mha_block__prompt.s.ref').read().split('; Override launch')[0]

def kd(name,nv,ns=96):
    if isinstance(nv,tuple): acc,nv=nv
    else: acc=(nv+3)//4*4
    return f""".p2align 6
.amdhsa_kernel {name}
  .amdhsa_next_free_vgpr {nv}
  .amdhsa_next_free_sgpr {ns}
  .amdhsa_accum_offset {acc}
  .amdhsa_group_segment_fixed_size 0
  .amdhsa_kernarg_size 96
  .amdhsa_user_sgpr_count 2
  .amdhsa_user_sgpr_kernarg_segment_ptr 1
  .amdhsa_system_sgpr_workgroup_id_x 1
.end_amdhsa_kernel
"""
def build(kernels):
    o=HDR
    for n,t,nv,g,b,l in kernels:
        o+=f"; @launch kernel={n} grid=({g},1,1) block=({b},1,1) lds={l}\n"
    o+='.amdgcn_target "amdgcn-amd-amdhsa--gfx950"\n.text\n'
    for n,t,nv,g,b,l in kernels:
        o+=f".globl {n}\n.p2align 8\n.type {n},@function\n{n}:\n{t}\n"
    o+='.section .rodata,"a"\n'
    for n,t,nv,g,b,l in kernels:
        o+=kd(n,nv)
    return o
if __name__=="__main__":
    ap=argparse.ArgumentParser()
    ap.add_argument("--nq",type=int,default=1)
    ap.add_argument("--only",default="")
    ap.add_argument("--prof",action="store_true")
    ap.add_argument("--var",default="")
    ap.add_argument("--st",default="")
    ap.add_argument("--dbgk",action="store_true")
    ap.add_argument("--rot",type=int,default=1)
    ap.add_argument("--prio",type=int,default=1)
    ap.add_argument("--zrows",type=int,default=1)
    ap.add_argument("-o",default="gated_mix__grouped_kv_mqa__mha_block__prompt.s")
    args=ap.parse_args()
    ks=[]
    if args.only in ("","proj"):
        try:
            from gen_proj import gen_proj
            t,nv,g,b,l=gen_proj(prof=args.prof,rot=args.rot,var=args.var); ks.append(("proj_kernel",t,nv,g,b,l))
        except ImportError: pass
    if args.only in ("","attn"):
        t,nv,b=gen_attn(args.nq,prof=args.prof,var=args.var,prio=args.prio,zrows=args.zrows); ks.append(("attn_kernel",t,nv,256,b,163840))
    if args.only in ("","out"):
        try:
            from gen_out import gen_out
            t,nv,g,b,l=gen_out(prof=args.prof,rot=args.rot); ks.append(("out_kernel",t,nv,g,b,l))
        except ImportError: pass
    if args.dbgk:
        t=f"""  s_cmp_ge_u32 s2, 1
  s_cbranch_scc1 Ldbg_end
  s_load_dwordx4 s[4:7], s[0:1], 80
  v_and_b32 v1, 3, v0
  v_lshrrev_b32 v2, 2, v0
  v_lshlrev_b32 v1, 2, v1
  ; lane group g=lane>>2 : 0 proj wg0, 1 attn wg0, 2 out wg0, 3 attn last wave of wg 128
  v_mov_b32 v3, {WS_END+0x40000}
  v_cmp_eq_u32 vcc, 1, v2
  v_mov_b32 v4, {WS_END}
  s_nop 1
  v_cndmask_b32 v3, v3, v4, vcc
  v_cmp_eq_u32 vcc, 2, v2
  v_mov_b32 v4, {WS_END+0x80000}
  s_nop 1
  v_cndmask_b32 v3, v3, v4, vcc
  v_cmp_eq_u32 vcc, 3, v2
  v_mov_b32 v4, {WS_END+(128*16+15)*32}
  s_nop 1
  v_cndmask_b32 v3, v3, v4, vcc
  v_add_u32 v3, v3, v1
  v_lshlrev_b32 v5, 2, v0
  s_waitcnt lgkmcnt(0)
  s_mov_b64 exec, 0xffff
  global_load_dword v6, v3, s[6:7]
  s_waitcnt vmcnt(0)
  global_store_dword v5, v6, s[4:5]
Ldbg_end:
  s_endpgm"""
        ks.append(("dbg_kernel",t,16,1,64,0))
    if args.st:
        import re
        ks=[(n,"\n".join((x+" "+args.st.replace("_"," ")) if x.strip().startswith("buffer_store") else x for x in t.split("\n")),nv,g,b,l) for n,t,nv,g,b,l in ks]
    open(args.o,"w").write(build(ks))
```

```python
from gen_common import *

def gen_attn(NQ=1, prof=False, var='', prio=1, zrows=1):
    NW=16//NQ
    NSTEP=160//NW
    a=A()
    NSB = 2 if NQ==1 else 4
    DQ = NSB//2
    S=[16+16*i for i in range(NSB)]
    p=16+16*NSB
    O=[p+16*i for i in range(NQ)]
    p+=16*NQ
    Qm=[p+4*i for i in range(NQ)]; p+=4*NQ
    Km=[p,p+4]; p+=8
    Kr=[p,p+4]; p+=8
    V=[p,p+8]; p+=16
    Qr=[p+2*i for i in range(NQ)]; p+=2*NQ
    WT=p; p+=8
    vWA=p; vWB=p+1; p+=2
    NV=p
    vIDX=1; vKm=2; vKr=3; vV=4; vL16=5; vG=[6,7]; vT=8; vT2=9; vM=[10,11]; vLane=12; vR8=13
    sHQ=12; sQB=13; sKV=14; sW=15; sT=16; sT2=17; sCH=18; sSYNC=19; sRETRY=20; sQT=22
    MV=24; MLO=26; MHI=28; sM0=32; sSRC=33
    def steps_needed(nchunks): return -(-(20*nchunks)//NW)
    a("s_cmp_ge_u32 s2, 256")
    a("s_cbranch_scc1 Lattn_end")
    a("s_load_dwordx2 s[4:5], s[0:1], 88")
    a("s_load_dwordx2 s[6:7], s[0:1], 32")
    a("s_load_dwordx2 s[38:39], s[0:1], 56")
    if prof:
        a("s_memtime s[40:41]"); a("s_memrealtime s[50:51]")
    a(f"v_and_b32 v{vLane}, 63, v0")
    a(f"v_lshrrev_b32 v{vT}, 6, v0")
    a(f"v_lshlrev_b32 v{vL16}, 4, v{vLane}")
    a(f"v_readfirstlane_b32 s{sW}, v{vT}")
    a("s_and_b32 s16, s2, 7")
    a("s_lshr_b32 s17, s2, 3")
    a(f"s_and_b32 s{sQB}, s17, 3")
    a("s_lshr_b32 s17, s17, 2")
    a("s_lshl_b32 s16, s16, 2")
    a("s_and_b32 s23, s17, 3")
    a("s_add_u32 s16, s16, s23")
    a("s_lshr_b32 s17, s17, 2")
    a("s_lshl_b32 s23, s17, 5")
    a(f"s_add_u32 s{sHQ}, s16, s23")
    a("s_cmp_eq_u32 s17, 0")
    a(f"s_cselect_b32 s{sKV}, 32, s16")
    a(f"s_mul_i32 s{sKV}, s{sKV}, {KV_BYTES}")
    a(f"s_add_u32 s{sKV}, s{sKV}, {WS_KV}")
    a(f"s_lshl_b32 s{sM0}, s{sW}, 10")
    a(f"s_add_u32 s{sSRC}, s{sM0}, s{sKV}")
    a(f"s_lshl_b32 s{sQT}, s{sQB}, 4")
    a(f"s_mul_i32 s16, s{sW}, {NQ}")
    a(f"s_add_u32 s{sQT}, s{sQT}, s16")
    a(f"v_and_b32 v{vT}, 31, v{vLane}")
    a(f"v_lshlrev_b32 v{vR8}, 3, v{vT}")
    a(f"v_lshlrev_b32 v{vT2}, 2, v{vT}")
    a(f"s_mov_b32 s10, {WS_END}")
    a("s_mov_b32 s11, 0x00020000")
    a(f"s_mul_i32 s16, s{sHQ}, {QH_BYTES}")
    a(f"s_lshl_b32 s23, s{sQT}, 10")
    a("s_add_u32 s23, s23, s16")
    a(f"s_lshl_b32 s30, s{sQT}, 8")
    a("s_add_u32 s30, s30, s16")
    a("s_add_u32 s30, s30, 65536")
    a("s_lshl_b32 s31, s17, 13")
    a(f"s_lshl_b32 s16, s{sQT}, 7")
    a("s_add_u32 s31, s31, s16")
    a(f"s_add_u32 s31, s31, {WS_G}")
    a(f"s_mov_b32 m0, s{sM0}")
    a("s_waitcnt lgkmcnt(0)")
    a("s_mov_b32 s8, s4")
    a("s_mov_b32 s9, s5")
    def dma(s):
        a(f"buffer_load_dwordx4 v{vL16}, s[8:11], s{sSRC} offen lds")
        if s<NSTEP-1:
            a(f"s_add_u32 s{sM0}, s{sM0}, {NW*1024}")
            a(f"s_add_u32 s{sSRC}, s{sSRC}, {NW*1024}")
            a(f"s_mov_b32 m0, s{sM0}")
            a("s_nop 0")
    N1=steps_needed(1)
    dma(0)
    for i in range(NQ):
        a(f"buffer_load_dwordx4 {vr(Qm[i],4)}, v{vL16}, s[8:11], s23 offen offset:{1024*i}")
    for i in range(NQ):
        a(f"buffer_load_dwordx2 {vr(Qr[i],2)}, v{vR8}, s[8:11], s30 offen offset:{256*i}")
    for s in range(1,N1): dma(s)
    for i in range(NQ):
        a(f"buffer_load_dword v{vG[i]}, v{vT2}, s[8:11], s31 offen offset:{128*i}")
    sF=21
    a(f"s_mul_i32 s{sF}, s2, {NW}")
    a(f"s_add_u32 s{sF}, s{sF}, s{sW}")
    a(f"s_mul_i32 s16, s{sF}, 5243")
    a("s_lshr_b32 s16, s16, 20")
    a("s_mul_i32 s17, s16, 200")
    a(f"s_sub_u32 s17, s{sF}, s17")
    a("s_mul_i32 s23, s17, 205")
    a("s_lshr_b32 s23, s23, 10")
    a("s_mul_i32 s30, s23, 5")
    a("s_sub_u32 s17, s17, s30")
    a("s_cmp_lt_u32 s23, 20")
    a("s_cselect_b32 s36, s6, s38")
    a("s_cselect_b32 s37, s7, s39")
    a("s_cselect_b32 s30, 0, 20")
    a("s_sub_u32 s23, s23, s30")
    a("s_lshl_b32 s23, s23, 2")
    a(f"s_cmp_lt_u32 s{sF}, 1600")
    a(f"s_cselect_b32 s38, {640*1280}, 0")
    a("s_mov_b32 s39, 0x00020000")
    a(f"v_lshrrev_b32 v{vT}, 4, v{vLane}")
    a(f"v_add_u32 v{vT}, s23, v{vT}")
    a(f"v_mul_u32_u24 v{vT2}, 205, v{vT}")
    a(f"v_lshrrev_b32 v{vT2}, 10, v{vT2}")
    a(f"v_mul_u32_u24 v{vWA}, 5, v{vT2}")
    a(f"v_sub_u32 v{vT}, v{vT}, v{vWA}")
    a(f"v_mul_u32_u24 v{vWA}, 40, v{vT2}")
    a(f"v_lshrrev_b32 v{vT2}, 1, v{vT}")
    a(f"v_mul_u32_u24 v{vT2}, 20, v{vT2}")
    a(f"v_and_b32 v{vWB}, 1, v{vT}")
    a(f"v_lshl_add_u32 v{vT2}, v{vWB}, 3, v{vT2}")
    a(f"v_cmp_eq_u32 vcc, 4, v{vT}")
    a(f"v_mov_b32 v{vWB}, {4*1280}")
    a(f"v_mov_b32 v{vT}, {20*1280}")
    a(f"v_cndmask_b32 v{vT2}, v{vT2}, 16, vcc")
    a(f"v_cndmask_b32 v{vWB}, v{vWB}, v{vT}, vcc")
    a(f"v_add_u32 v{vWA}, v{vWA}, v{vT2}")
    a(f"v_mul_u32_u24 v{vWA}, 1280, v{vWA}")
    a(f"v_and_b32 v{vT}, 15, v{vLane}")
    a(f"v_and_b32 v{vT2}, 12, v{vT}")
    a("s_cmp_lt_u32 s17, 4")
    a("s_cselect_b32 s30, -1, 0")
    a(f"v_and_b32 v{vT2}, s30, v{vT2}")
    a(f"v_add_u32 v{vT}, v{vT}, v{vT2}")
    a("s_lshr_b32 s30, s17, 1")
    a("s_lshl_b32 s30, s30, 5")
    a("s_and_b32 s17, s17, 1")
    a("s_lshl_b32 s17, s17, 2")
    a("s_add_u32 s30, s30, s17")
    a("s_mul_i32 s16, s16, 80")
    a("s_add_u32 s30, s30, s16")
    a("s_lshl_b32 s34, s30, 1")
    a(f"v_lshl_add_u32 v{vWA}, v{vT}, 1, v{vWA}")
    a(f"v_add_u32 v{vWB}, v{vWB}, v{vWA}")
    a(f"s_mov_b32 s{MV}, 0x000fffff")
    a(f"s_mov_b32 s{MV+1}, 0x000fffff")
    a(f"s_mov_b32 s{MLO}, -1")
    a(f"s_mov_b32 s{MLO+1}, 0")
    a(f"s_mov_b32 s{MHI}, 0")
    a(f"s_mov_b32 s{MHI+1}, -1")
    a(f"v_mov_b32 v{vIDX}, 0xdddddddd")
    if zrows:
        a(f"v_mov_b32 v{vT2}, 0")
        a("s_mov_b32 s16, 0x01100000")
        a("s_mov_b32 s17, 0x01100000")
        a("s_mov_b64 exec, s[16:17]")
        a(f"v_mov_b32 v{vT2}, 0x3f803f80")
        a("s_mov_b64 exec, -1")
    else:
        a(f"v_mov_b32 v{vT2}, 0x3f803f80")
    for b in range(2):
        for i in range(8): a(f"v_mov_b32 v{V[b]+i}, v{vT2}")
        a(f"v_mov_b32 v{Kr[b]}, 0x3f80"); a(f"v_mov_b32 v{Kr[b]+1}, 0")
        a(f"v_mov_b32 v{Kr[b]+2}, 0x3f80"); a(f"v_mov_b32 v{Kr[b]+3}, 0")
    a(f"s_mov_b32 s{sSYNC}, 2")
    a(f"s_mov_b32 s{sRETRY}, 0")
    a(f"v_lshrrev_b32 v{vT}, 5, v{vLane}")
    a(f"v_mul_u32_u24 v{vT}, 320, v{vT}")
    a(f"v_lshlrev_b32 v{vT2}, 1, v{vR8}")
    a(f"v_add_u32 v14, v{vT}, v{vT2}")
    a(f"v_add_u32 v14, 10240, v14")
    a.label("Lattn_zero")
    for i in range(NQ):
        for r in range(16): a(f"v_mov_b32 v{O[i]+r}, 0")
    for r in range(8,16): a(f"v_mov_b32 v{S[NSB-1]+r}, 0")
    a(f"s_cmp_lg_u32 s{sRETRY}, 0")
    a("s_cbranch_scc1 Lattn_start")
    a(f"s_waitcnt vmcnt({NQ})")
    a(f"s_mov_b64 exec, s[{MHI}:{MHI+1}]")
    for i in range(NQ):
        a(f"v_mov_b32 v{Qr[i]}, 0"); a(f"v_mov_b32 v{Qr[i]+1}, 0")
    a("s_mov_b64 exec, -1")
    a("s_barrier")
    if prof: a("s_memtime s[42:43]")
    a.label("Lattn_start")
    a(f"v_mov_b32 v{vKm}, v{vL16}")
    a(f"v_add_u32 v{vKr}, 8192, v{vR8}")
    a(f"v_mov_b32 v{vV}, v14")
    a(f"ds_read_b128 {vr(Km[0],4)}, v{vKm}")
    a(f"ds_read_b128 {vr(Km[1],4)}, v{vKm} offset:1024")
    a(f"s_mov_b64 exec, s[{MLO}:{MLO+1}]")
    a(f"ds_read2_b64 {vr(Kr[0],4)}, v{vKr} offset0:0 offset1:32")
    a(f"s_mov_b64 exec, s[{MV}:{MV+1}]")
    a(f"ds_read_b128 {vr(V[0],4)}, v{vV}")
    a(f"ds_read_b128 {vr(V[0]+4,4)}, v{vV} offset:640")
    a("s_mov_b64 exec, -1")
    a("s_waitcnt lgkmcnt(2)")
    for i in range(NQ):
        a(f"v_mfma_f32_32x32x8_bf16 {vr(S[i],16)}, {vr(Kr[0],2)}, {vr(Qr[i],2)}, 0")
        a(f"v_mfma_f32_32x32x16_bf16 {vr(S[i],16)}, {vr(Km[0],4)}, {vr(Qm[i],4)}, {vr(S[i],16)}")
    a(f"s_mov_b32 s{sCH}, 0")
    a(f"s_cmp_lg_u32 s{sRETRY}, 0")
    a("s_nop 9" if NQ==1 else "s_nop 7")
    a("s_cbranch_scc1 Lattn_havemax")
    for i in range(NQ):
        for r in range(0,16,2):
            if r==0: a(f"v_max_f32 v{vM[i]}, v{S[i]+r}, v{S[i]+r+1}")
            else: a(f"v_max3_f32 v{vM[i]}, v{S[i]+r}, v{S[i]+r+1}, v{vM[i]}")
    a.label("Lattn_havemax")
    for i in range(NQ):
        a(f"v_mov_b32 v{vT}, v{vM[i]}")
        a("s_nop 1")
        a(f"v_permlane32_swap_b32 v{vM[i]}, v{vT}")
        a("s_nop 1")
        a(f"v_max_f32 v{vM[i]}, v{vM[i]}, v{vT}")
        a(f"v_xor_b32 v{vM[i]}, 0x80000000, v{vM[i]}")
        a(f"v_and_b32 v{vM[i]}, 0xffff0000, v{vM[i]}")
    a(f"s_mov_b64 exec, s[{MHI}:{MHI+1}]")
    for i in range(NQ):
        a(f"v_lshrrev_b32 v{Qr[i]}, 16, v{vM[i]}")
    a("s_mov_b64 exec, -1")
    for i in range(NQ):
        for r in range(16): a(f"v_add_f32 v{S[i]+r}, v{S[i]+r}, v{vM[i]}")
    if prof:
        a("s_memtime s[44:45]"); a("s_waitcnt lgkmcnt(0)")
    if prio: a("s_setprio 3")
    KD = 2
    st={'next':N1}
    def chunk(kind):
        for t in range(8):
            for sub in range(NQ):
                u=t*NQ+sub
                cur=S[u%NSB]; nxt=S[(u+DQ)%NSB]; prv=S[(u-1)%NSB]
                pt,psub=divmod(u-1+8*NQ,NQ)
                nt,nsub=divmod(u+DQ,NQ)
                def e(i): a(f"v_exp_f32 v{cur+i}, v{cur+i}")
                a.c(f"--- tile {t} sub {sub}")
                e(0); e(1)
                a(f"v_smfmac_f32_32x32x32_bf16 {vr(O[psub],16)}, {vr(V[pt%2]+4,4)}, {vr(prv+8,8)}, v{vIDX}")
                e(2); e(3)
                if kind==0:
                    nd = 2 if (NSTEP-st['next']) > (8*NQ-u) else 1
                    for _ in range(nd):
                        if st['next']<NSTEP:
                            dma(st['next']); st['next']+=1
                e(4); e(5)
                if sub==0: a("s_waitcnt lgkmcnt(0)")
                krb=Kr[(nt>>1)%2]+2*(nt&1)
                a(f"v_mfma_f32_32x32x8_bf16 {vr(nxt,16)}, {vr(krb,2)}, {vr(Qr[nsub],2)}, 0")
                e(6); e(7); e(8); e(9)
                a(f"v_mfma_f32_32x32x16_bf16 {vr(nxt,16)}, {vr(Km[nt%2],4)}, {vr(Qm[nsub],4)}, {vr(nxt,16)}")
                e(10); e(11); e(12); e(13)
                if sub==0:
                    kt=t+KD
                    if kt==8:
                        if kind==0:
                            a(f"s_waitcnt vmcnt({st['next']-steps_needed(2)})")
                            a("s_barrier")
                            if prof: a("s_memtime s[56:57]")
                        if kind==1:
                            a("s_waitcnt vmcnt(0)")
                            a("s_barrier")
                            if prof: a("s_memtime s[58:59]")
                            for ee in range(8):
                                a(f"buffer_load_ushort v{WT+ee}, v{vWA if ee<4 else vWB}, s[36:39], s34 offen offset:{(ee&3)*1280}")
                        a(f"v_add_u32 v{vKr}, {CHUNK}, v{vKr}")
                    a(f"s_mov_b64 exec, s[{MV}:{MV+1}]")
                    vt=t+1
                    voff = vt*1280 if vt<8 else CHUNK+(vt-8)*1280
                    a(f"ds_read_b128 {vr(V[vt%2],4)}, v{vV} offset:{voff}")
                    a(f"v_smfmac_f32_32x32x32_bf16 {vr(O[sub],16)}, {vr(V[t%2],4)}, {vr(cur,8)}, v{vIDX}")
                    a(f"ds_read_b128 {vr(V[vt%2]+4,4)}, v{vV} offset:{voff+640}")
                    if kt%2==0:
                        a(f"s_mov_b64 exec, s[{MLO}:{MLO+1}]")
                        j=kt%8
                        a(f"ds_read2_b64 {vr(Kr[(kt>>1)%2],4)}, v{vKr} offset0:{32*j} offset1:{32*j+32}")
                    a("s_mov_b64 exec, -1")
                    koff = kt*1024 if kt<8 else CHUNK+(kt-8)*1024
                    a(f"ds_read_b128 {vr(Km[kt%2],4)}, v{vKm} offset:{koff}")
                else:
                    a(f"v_smfmac_f32_32x32x32_bf16 {vr(O[sub],16)}, {vr(V[t%2],4)}, {vr(cur,8)}, v{vIDX}")
                e(14); e(15)
        a(f"v_add_u32 v{vKm}, {CHUNK}, v{vKm}")
        a(f"v_add_u32 v{vV}, {CHUNK}, v{vV}")
    a(f"s_cmp_lg_u32 s{sRETRY}, 0")
    a("s_cbranch_scc1 Lattn_loop")
    a.label("Lattn_peel")
    chunk(0)
    assert st['next']==NSTEP
    chunk(1)
    a(f"s_mov_b32 s{sCH}, 2")
    a(".p2align 6")
    a.label("Lattn_loop")
    chunk(2)
    a(f"s_add_u32 s{sCH}, s{sCH}, 1")
    if prio:
        a(f"s_cmp_lt_u32 s{sCH}, 5")
        a("s_cbranch_scc1 Lattn_loop")
        a("s_setprio 2")
        a(f"s_cmp_eq_u32 s{sCH}, 5")
        a("s_cbranch_scc1 Lattn_loop")
        a("s_setprio 1")
        a(f"s_cmp_eq_u32 s{sCH}, 6")
        a("s_cbranch_scc1 Lattn_loop")
        a("s_setprio 0")
    a(f"s_cmp_lt_u32 s{sCH}, 8")
    a("s_cbranch_scc1 Lattn_loop")
    a.label("Lattn_loopend")
    lastu=8*NQ-1
    a(f"v_smfmac_f32_32x32x32_bf16 {vr(O[NQ-1],16)}, {vr(V[7%2]+4,4)}, {vr(S[lastu%NSB]+8,8)}, v{vIDX}")
    a("s_waitcnt lgkmcnt(0)")
    if prof:
        a("s_memtime s[46:47]"); a("s_waitcnt lgkmcnt(0)")
    a(f"s_lshr_b32 s16, s{sHQ}, 1")
    a("s_mul_i32 s16, s16, 2560")
    a(f"s_mul_i32 s17, s{sQT}, 81920")
    a("s_add_u32 s16, s16, s17")
    a(f"s_add_u32 s16, s16, {WS_O}")
    a(f"s_and_b32 s17, s{sHQ}, 1")
    a("s_lshl_b32 s23, s17, 10")
    a("s_add_u32 s23, s23, s16")
    a("s_lshl_b32 s17, s17, 3")
    a("s_add_u32 s16, s16, s17")
    a("s_add_u32 s16, s16, 2048")
    a(f"v_mov_b32 v{vT}, 0x5d800000")
    a("s_mov_b64 s[30:31], -1")
    a("s_nop 3")
    for i in range(NQ):
        a(f"s_mov_b64 exec, s[{MHI}:{MHI+1}]")
        a(f"v_mov_b32 v{O[i]+12}, v{O[i]+8}")
        a("s_mov_b64 exec, -1")
        a(f"v_cmp_lt_f32 vcc, v{O[i]+12}, v{vT}")
        a("s_nop 1")
        a("s_and_b64 s[30:31], s[30:31], vcc")
    a("s_cmp_eq_u64 s[30:31], -1")
    a("s_cbranch_scc0 Lattn_fallback")
    a.label("Lattn_ok")
    for i in range(NQ):
        a(f"v_rcp_f32 v{vT}, v{O[i]+12}")
        a("s_nop 0")
        a(f"v_mul_f32 v{vT}, v{vT}, v{vG[i]}")
        for r in range(12): a(f"v_mul_f32 v{O[i]+r}, v{O[i]+r}, v{vT}")
        for r in range(6): a(f"v_cvt_pk_bf16_f32 v{S[i]+r}, v{O[i]+2*r}, v{O[i]+2*r+1}")
        a(f"buffer_store_dwordx4 {vr(S[i],4)}, v{vL16}, s[8:11], s23 offen")
        a(f"s_mov_b64 exec, s[{MLO}:{MLO+1}]")
        a(f"buffer_store_dwordx2 {vr(S[i]+4,2)}, v{vL16}, s[8:11], s16 offen")
        a("s_mov_b64 exec, -1")
        if i<NQ-1:
            a("s_add_u32 s23, s23, 81920")
            a("s_add_u32 s16, s16, 81920")
    a(f"s_cmp_ge_u32 s{sF}, 1600")
    a("s_cbranch_scc1 Lattn_nowt")
    a(f"s_lshl_b32 s16, s{sF}, 10")
    a(f"s_add_u32 s16, s16, {WS_WT}")
    a(f"s_waitcnt vmcnt({2*NQ})")
    for ee in range(4): a(f"v_lshl_or_b32 v{WT+ee}, v{WT+2*ee+1}, 16, v{WT+2*ee}")
    a(f"buffer_store_dwordx4 {vr(WT,4)}, v{vL16}, s[8:11], s16 offen")
    a.label("Lattn_nowt")
    if prof: prof_end(a,40,50,52,8,sW,NW,0,mids=(42,44,56,58,46))
    a.label("Lattn_end")
    a("s_endpgm")
    a.label("Lattn_fallback")
    a(f"s_cmp_lg_u32 s{sRETRY}, 0")
    a("s_cbranch_scc1 Lattn_ok")
    a(f"s_mov_b32 s{sRETRY}, 1")
    a(f"s_mov_b64 exec, s[{MHI}:{MHI+1}]")
    for i in range(NQ):
        a(f"v_mov_b32 v{Qr[i]}, 0")
    a("s_mov_b64 exec, -1")
    for i in range(NQ): a(f"v_mov_b32 v{vM[i]}, 0xff800000")
    a(f"s_mov_b32 s{sT}, 0")
    a.label("Lattn_mloop")
    a(f"s_lshr_b32 s23, s{sT}, 3")
    a(f"s_mul_i32 s23, s23, {CHUNK}")
    a(f"s_and_b32 s{sT2}, s{sT}, 7")
    a(f"s_lshl_b32 s30, s{sT2}, 10")
    a("s_add_u32 s30, s30, s23")
    a(f"s_lshl_b32 s31, s{sT2}, 8")
    a("s_add_u32 s31, s31, s23")
    a(f"v_add_u32 v{vT}, s30, v{vL16}")
    a(f"v_add_u32 v{vT2}, s31, v{vR8}")
    a(f"ds_read_b128 {vr(Km[0],4)}, v{vT}")
    a(f"s_mov_b64 exec, s[{MLO}:{MLO+1}]")
    a(f"ds_read_b64 {vr(Kr[0],2)}, v{vT2} offset:8192")
    a("s_mov_b64 exec, -1")
    a("s_waitcnt lgkmcnt(0)")
    for i in range(NQ):
        a(f"v_mfma_f32_32x32x8_bf16 {vr(S[i],16)}, {vr(Kr[0],2)}, {vr(Qr[i],2)}, 0")
        a(f"v_mfma_f32_32x32x16_bf16 {vr(S[i],16)}, {vr(Km[0],4)}, {vr(Qm[i],4)}, {vr(S[i],16)}")
    a("s_nop 15")
    for i in range(NQ):
        for r in range(0,16,2):
            a(f"v_max3_f32 v{vM[i]}, v{S[i]+r}, v{S[i]+r+1}, v{vM[i]}")
    a(f"s_add_u32 s{sT}, s{sT}, 1")
    a(f"s_cmp_lt_u32 s{sT}, 64")
    a("s_cbranch_scc1 Lattn_mloop")
    a("s_branch Lattn_zero")
    txt=a.text()
    if var:
        head,rest=txt.split("Lattn_peel:",1)
        body,tail=rest.split("Lattn_loopend:",1)
        L=body.split("\n")
        if 'nosm' in var: L=[x for x in L if 'v_smfmac' not in x]
        if 'noqk' in var: L=[x for x in L if 'v_mfma' not in x]
        if 'noexp' in var: L=[x for x in L if 'v_exp' not in x]
        if 'nods' in var: L=[x for x in L if 'ds_read' not in x]
        if 'noexec' in var: L=[x for x in L if 'exec' not in x]
        if 'nowait' in var: L=[x for x in L if 'lgkmcnt' not in x]
        txt=head+"Lattn_peel:"+"\n".join(L)+"Lattn_loopend:"+tail
        txt=txt.replace("s_cbranch_scc0 Lattn_fallback","s_nop 0",1)
    return txt, NV, 64*NW
```

```python
import sys, argparse
from gen_common import *
from gen_attn import gen_attn
HDR=open('gated_mix__grouped_kv_mqa__mha_block__prompt.s.ref').read().split('; Override launch')[0]

def kd(name,nv,ns=96):
    if isinstance(nv,tuple): acc,nv=nv
    else: acc=(nv+3)//4*4
    return f""".p2align 6
.amdhsa_kernel {name}
  .amdhsa_next_free_vgpr {nv}
  .amdhsa_next_free_sgpr {ns}
  .amdhsa_accum_offset {acc}
  .amdhsa_group_segment_fixed_size 0
  .amdhsa_kernarg_size 96
  .amdhsa_user_sgpr_count 2
  .amdhsa_user_sgpr_kernarg_segment_ptr 1
  .amdhsa_system_sgpr_workgroup_id_x 1
.end_amdhsa_kernel
"""
def build(kernels):
    o=HDR
    for n,t,nv,g,b,l in kernels:
        o+=f"; @launch kernel={n} grid=({g},1,1) block=({b},1,1) lds={l}\n"
    o+='.amdgcn_target "amdgcn-amd-amdhsa--gfx950"\n.text\n'
    for n,t,nv,g,b,l in kernels:
        o+=f".globl {n}\n.p2align 8\n.type {n},@function\n{n}:\n{t}\n"
    o+='.section .rodata,"a"\n'
    for n,t,nv,g,b,l in kernels:
        o+=kd(n,nv)
    return o
if __name__=="__main__":
    ap=argparse.ArgumentParser()
    ap.add_argument("--nq",type=int,default=1)
    ap.add_argument("--only",default="")
    ap.add_argument("--prof",action="store_true")
    ap.add_argument("--var",default="")
    ap.add_argument("--st",default="")
    ap.add_argument("--wsoff",type=int,default=0)
    ap.add_argument("--dbgk",action="store_true")
    ap.add_argument("--rot",type=int,default=1)
    ap.add_argument("--roto",type=int,default=1)
    ap.add_argument("--prio",type=int,default=1)
    ap.add_argument("--zrows",type=int,default=1)
    ap.add_argument("-o",default="gated_mix__grouped_kv_mqa__mha_block__prompt.s")
    args=ap.parse_args()
    ks=[]
    if args.only in ("","proj"):
        try:
            from gen_proj import gen_proj
            t,nv,g,b,l=gen_proj(prof=args.prof,rot=args.rot,var=args.var); ks.append(("proj_kernel",t,nv,g,b,l))
        except ImportError: pass
    if args.only in ("","attn"):
        t,nv,b=gen_attn(args.nq,prof=args.prof,var=args.var,prio=args.prio,zrows=args.zrows); ks.append(("attn_kernel",t,nv,256,b,163840))
    if args.only in ("","out"):
        try:
            from gen_out import gen_out
            t,nv,g,b,l=gen_out(prof=args.prof,rot=args.roto); ks.append(("out_kernel",t,nv,g,b,l))
        except ImportError: pass
    if args.dbgk:
        t=f"""  s_cmp_ge_u32 s2, 1
  s_cbranch_scc1 Ldbg_end
  s_load_dwordx4 s[4:7], s[0:1], 80
  v_and_b32 v1, 3, v0
  v_lshrrev_b32 v2, 2, v0
  v_lshlrev_b32 v1, 2, v1
  ; lane group g=lane>>2 : 0 proj wg0, 1 attn wg0, 2 out wg0, 3 attn last wave of wg 128
  v_mov_b32 v3, {WS_END+0x40000}
  v_cmp_eq_u32 vcc, 1, v2
  v_mov_b32 v4, {WS_END}
  s_nop 1
  v_cndmask_b32 v3, v3, v4, vcc
  v_cmp_eq_u32 vcc, 2, v2
  v_mov_b32 v4, {WS_END+0x80000}
  s_nop 1
  v_cndmask_b32 v3, v3, v4, vcc
  v_cmp_eq_u32 vcc, 3, v2
  v_mov_b32 v4, {WS_END+(128*16+15)*32}
  s_nop 1
  v_cndmask_b32 v3, v3, v4, vcc
  v_add_u32 v3, v3, v1
  v_lshlrev_b32 v5, 2, v0
  s_waitcnt lgkmcnt(0)
  s_mov_b64 exec, 0xffff
  global_load_dword v6, v3, s[6:7]
  s_waitcnt vmcnt(0)
  global_store_dword v5, v6, s[4:5]
Ldbg_end:
  s_endpgm"""
        ks.append(("dbg_kernel",t,16,1,64,0))
    if args.wsoff:
        def addoff(t):
            L=t.split("\n"); out=[]; done=False
            for x in L:
                out.append(x)
                if not done and x.strip()=="s_waitcnt lgkmcnt(0)":
                    out.append(f"  s_add_u32 s4, s4, {args.wsoff<<20}"); out.append("  s_addc_u32 s5, s5, 0"); done=True
            return "\n".join(out)
        ks=[(n,addoff(t),nv,g,b,l) for n,t,nv,g,b,l in ks]
    if args.st:
        import re
        ks=[(n,"\n".join((x+" "+args.st.replace("_"," ")) if x.strip().startswith("buffer_store") else x for x in t.split("\n")),nv,g,b,l) for n,t,nv,g,b,l in ks]
    open(args.o,"w").write(build(ks))
```

```python
from gen_common import *

def gen_attn(NQ=1, prof=False, var='', prio=1, zrows=1):
    NW=16//NQ
    NSTEP=160//NW
    a=A()
    NSB = 2 if NQ==1 else 4
    DQ = NSB//2
    S=[16+16*i for i in range(NSB)]
    p=16+16*NSB
    O=[p+16*i for i in range(NQ)]
    p+=16*NQ
    Qm=[p+4*i for i in range(NQ)]; p+=4*NQ
    Km=[p,p+4]; p+=8
    Kr=[p,p+4]; p+=8
    V=[p,p+8]; p+=16
    Qr=[p+2*i for i in range(NQ)]; p+=2*NQ
    WT=p; p+=8
    vWA=p; vWB=p+1; p+=2
    NV=p
    vIDX=1; vKm=2; vKr=3; vV=4; vL16=5; vG=[6,7]; vT=8; vT2=9; vM=[10,11]; vLane=12; vR8=13
    sHQ=12; sQB=13; sKV=14; sW=15; sT=16; sT2=17; sCH=18; sSYNC=19; sRETRY=20; sQT=22
    MV=24; MLO=26; MHI=28; sM0=32; sSRC=33
    def steps_needed(nchunks): return -(-(20*nchunks)//NW)
    a("s_cmp_ge_u32 s2, 256")
    a("s_cbranch_scc1 Lattn_end")
    a("s_load_dwordx2 s[4:5], s[0:1], 88")
    a("s_load_dwordx2 s[6:7], s[0:1], 32")
    a("s_load_dwordx2 s[38:39], s[0:1], 56")
    if prof:
        a("s_memtime s[40:41]"); a("s_memrealtime s[50:51]")
    a(f"v_and_b32 v{vLane}, 63, v0")
    a(f"v_lshrrev_b32 v{vT}, 6, v0")
    a(f"v_lshlrev_b32 v{vL16}, 4, v{vLane}")
    a(f"v_readfirstlane_b32 s{sW}, v{vT}")
    a("s_and_b32 s16, s2, 7")
    a("s_lshr_b32 s17, s2, 3")
    a(f"s_and_b32 s{sQB}, s17, 3")
    a("s_lshr_b32 s17, s17, 2")
    a("s_lshl_b32 s16, s16, 2")
    a("s_and_b32 s23, s17, 3")
    a("s_add_u32 s16, s16, s23")
    a("s_lshr_b32 s17, s17, 2")
    a("s_lshl_b32 s23, s17, 5")
    a(f"s_add_u32 s{sHQ}, s16, s23")
    a("s_cmp_eq_u32 s17, 0")
    a(f"s_cselect_b32 s{sKV}, 32, s16")
    a(f"s_mul_i32 s{sKV}, s{sKV}, {KV_BYTES}")
    a(f"s_add_u32 s{sKV}, s{sKV}, {WS_KV}")
    a(f"s_lshl_b32 s{sM0}, s{sW}, 10")
    a(f"s_add_u32 s{sSRC}, s{sM0}, s{sKV}")
    a(f"s_lshl_b32 s{sQT}, s{sQB}, 4")
    a(f"s_mul_i32 s16, s{sW}, {NQ}")
    a(f"s_add_u32 s{sQT}, s{sQT}, s16")
    a(f"v_and_b32 v{vT}, 31, v{vLane}")
    a(f"v_lshlrev_b32 v{vR8}, 3, v{vT}")
    a(f"v_lshlrev_b32 v{vT2}, 2, v{vT}")
    a(f"s_mov_b32 s10, {WS_END}")
    a("s_mov_b32 s11, 0x00020000")
    a(f"s_mul_i32 s16, s{sHQ}, {QH_BYTES}")
    a(f"s_lshl_b32 s23, s{sQT}, 10")
    a("s_add_u32 s23, s23, s16")
    a(f"s_lshl_b32 s30, s{sQT}, 8")
    a("s_add_u32 s30, s30, s16")
    a("s_add_u32 s30, s30, 65536")
    a("s_lshl_b32 s31, s17, 13")
    a(f"s_lshl_b32 s16, s{sQT}, 7")
    a("s_add_u32 s31, s31, s16")
    a(f"s_add_u32 s31, s31, {WS_G}")
    a(f"s_mov_b32 m0, s{sM0}")
    a("s_waitcnt lgkmcnt(0)")
    a("s_mov_b32 s8, s4")
    a("s_mov_b32 s9, s5")
    def dma(s):
        a(f"buffer_load_dwordx4 v{vL16}, s[8:11], s{sSRC} offen lds")
        if s<NSTEP-1:
            a(f"s_add_u32 s{sM0}, s{sM0}, {NW*1024}")
            a(f"s_add_u32 s{sSRC}, s{sSRC}, {NW*1024}")
            a(f"s_mov_b32 m0, s{sM0}")
            a("s_nop 0")
    N1=steps_needed(1)
    dma(0)
    for i in range(NQ):
        a(f"buffer_load_dwordx4 {vr(Qm[i],4)}, v{vL16}, s[8:11], s23 offen offset:{1024*i}")
    for i in range(NQ):
        a(f"buffer_load_dwordx2 {vr(Qr[i],2)}, v{vR8}, s[8:11], s30 offen offset:{256*i}")
    for s in range(1,N1): dma(s)
    for i in range(NQ):
        a(f"buffer_load_dword v{vG[i]}, v{vT2}, s[8:11], s31 offen offset:{128*i}")
    sF=21
    a(f"s_mul_i32 s{sF}, s2, {NW}")
    a(f"s_add_u32 s{sF}, s{sF}, s{sW}")
    a(f"s_mul_i32 s16, s{sF}, 5243")
    a("s_lshr_b32 s16, s16, 20")
    a("s_mul_i32 s17, s16, 200")
    a(f"s_sub_u32 s17, s{sF}, s17")
    a("s_mul_i32 s23, s17, 205")
    a("s_lshr_b32 s23, s23, 10")
    a("s_mul_i32 s30, s23, 5")
    a("s_sub_u32 s17, s17, s30")
    a("s_cmp_lt_u32 s23, 20")
    a("s_cselect_b32 s36, s6, s38")
    a("s_cselect_b32 s37, s7, s39")
    a("s_cselect_b32 s30, 0, 20")
    a("s_sub_u32 s23, s23, s30")
    a("s_lshl_b32 s23, s23, 2")
    a(f"s_cmp_lt_u32 s{sF}, 1600")
    a(f"s_cselect_b32 s38, {640*1280}, 0")
    a("s_mov_b32 s39, 0x00020000")
    a(f"v_lshrrev_b32 v{vT}, 4, v{vLane}")
    a(f"v_add_u32 v{vT}, s23, v{vT}")
    a(f"v_mul_u32_u24 v{vT2}, 205, v{vT}")
    a(f"v_lshrrev_b32 v{vT2}, 10, v{vT2}")
    a(f"v_mul_u32_u24 v{vWA}, 5, v{vT2}")
    a(f"v_sub_u32 v{vT}, v{vT}, v{vWA}")
    a(f"v_mul_u32_u24 v{vWA}, 40, v{vT2}")
    a(f"v_lshrrev_b32 v{vT2}, 1, v{vT}")
    a(f"v_mul_u32_u24 v{vT2}, 20, v{vT2}")
    a(f"v_and_b32 v{vWB}, 1, v{vT}")
    a(f"v_lshl_add_u32 v{vT2}, v{vWB}, 3, v{vT2}")
    a(f"v_cmp_eq_u32 vcc, 4, v{vT}")
    a(f"v_mov_b32 v{vWB}, {4*1280}")
    a(f"v_mov_b32 v{vT}, {20*1280}")
    a(f"v_cndmask_b32 v{vT2}, v{vT2}, 16, vcc")
    a(f"v_cndmask_b32 v{vWB}, v{vWB}, v{vT}, vcc")
    a(f"v_add_u32 v{vWA}, v{vWA}, v{vT2}")
    a(f"v_mul_u32_u24 v{vWA}, 1280, v{vWA}")
    a(f"v_and_b32 v{vT}, 15, v{vLane}")
    a(f"v_and_b32 v{vT2}, 12, v{vT}")
    a("s_cmp_lt_u32 s17, 4")
    a("s_cselect_b32 s30, -1, 0")
    a(f"v_and_b32 v{vT2}, s30, v{vT2}")
    a(f"v_add_u32 v{vT}, v{vT}, v{vT2}")
    a("s_lshr_b32 s30, s17, 1")
    a("s_lshl_b32 s30, s30, 5")
    a("s_and_b32 s17, s17, 1")
    a("s_lshl_b32 s17, s17, 2")
    a("s_add_u32 s30, s30, s17")
    a("s_mul_i32 s16, s16, 80")
    a("s_add_u32 s30, s30, s16")
    a("s_lshl_b32 s34, s30, 1")
    a(f"v_lshl_add_u32 v{vWA}, v{vT}, 1, v{vWA}")
    a(f"v_add_u32 v{vWB}, v{vWB}, v{vWA}")
    a(f"s_mov_b32 s{MV}, 0x000fffff")
    a(f"s_mov_b32 s{MV+1}, 0x000fffff")
    a(f"s_mov_b32 s{MLO}, -1")
    a(f"s_mov_b32 s{MLO+1}, 0")
    a(f"s_mov_b32 s{MHI}, 0")
    a(f"s_mov_b32 s{MHI+1}, -1")
    a(f"v_mov_b32 v{vIDX}, 0xdddddddd")
    if zrows:
        a(f"v_mov_b32 v{vT2}, 0")
        a("s_mov_b32 s16, 0x01100000")
        a("s_mov_b32 s17, 0x01100000")
        a("s_mov_b64 exec, s[16:17]")
        a(f"v_mov_b32 v{vT2}, 0x3f803f80")
        a("s_mov_b64 exec, -1")
    else:
        a(f"v_mov_b32 v{vT2}, 0x3f803f80")
    for b in range(2):
        for i in range(8): a(f"v_mov_b32 v{V[b]+i}, v{vT2}")
        a(f"v_mov_b32 v{Kr[b]}, 0x3f80"); a(f"v_mov_b32 v{Kr[b]+1}, 0")
        a(f"v_mov_b32 v{Kr[b]+2}, 0x3f80"); a(f"v_mov_b32 v{Kr[b]+3}, 0")
    a(f"s_mov_b32 s{sSYNC}, 2")
    a(f"s_mov_b32 s{sRETRY}, 0")
    a(f"v_lshrrev_b32 v{vT}, 5, v{vLane}")
    a(f"v_mul_u32_u24 v{vT}, 320, v{vT}")
    a(f"v_lshlrev_b32 v{vT2}, 1, v{vR8}")
    a(f"v_add_u32 v14, v{vT}, v{vT2}")
    a(f"v_add_u32 v14, 10240, v14")
    a.label("Lattn_zero")
    for i in range(NQ):
        for r in range(16): a(f"v_mov_b32 v{O[i]+r}, 0")
    for r in range(8,16): a(f"v_mov_b32 v{S[NSB-1]+r}, 0")
    a(f"s_cmp_lg_u32 s{sRETRY}, 0")
    a("s_cbranch_scc1 Lattn_start")
    a(f"s_waitcnt vmcnt({NQ})")
    a(f"s_mov_b64 exec, s[{MHI}:{MHI+1}]")
    for i in range(NQ):
        a(f"v_mov_b32 v{Qr[i]}, 0"); a(f"v_mov_b32 v{Qr[i]+1}, 0")
    a("s_mov_b64 exec, -1")
    a("s_barrier")
    if prof: a("s_memtime s[42:43]")
    a.label("Lattn_start")
    a(f"v_mov_b32 v{vKm}, v{vL16}")
    a(f"v_add_u32 v{vKr}, 8192, v{vR8}")
    a(f"v_mov_b32 v{vV}, v14")
    a(f"ds_read_b128 {vr(Km[0],4)}, v{vKm}")
    a(f"ds_read_b128 {vr(Km[1],4)}, v{vKm} offset:1024")
    a(f"s_mov_b64 exec, s[{MLO}:{MLO+1}]")
    a(f"ds_read2_b64 {vr(Kr[0],4)}, v{vKr} offset0:0 offset1:32")
    a(f"s_mov_b64 exec, s[{MV}:{MV+1}]")
    a(f"ds_read_b128 {vr(V[0],4)}, v{vV}")
    a(f"ds_read_b128 {vr(V[0]+4,4)}, v{vV} offset:640")
    a("s_mov_b64 exec, -1")
    a("s_waitcnt lgkmcnt(2)")
    for i in range(NQ):
        a(f"v_mfma_f32_32x32x8_bf16 {vr(S[i],16)}, {vr(Kr[0],2)}, {vr(Qr[i],2)}, 0")
        a(f"v_mfma_f32_32x32x16_bf16 {vr(S[i],16)}, {vr(Km[0],4)}, {vr(Qm[i],4)}, {vr(S[i],16)}")
    a(f"s_mov_b32 s{sCH}, 0")
    a(f"s_cmp_lg_u32 s{sRETRY}, 0")
    a("s_nop 9" if NQ==1 else "s_nop 7")
    a("s_cbranch_scc1 Lattn_havemax")
    for i in range(NQ):
        for r in range(0,16,2):
            if r==0: a(f"v_max_f32 v{vM[i]}, v{S[i]+r}, v{S[i]+r+1}")
            else: a(f"v_max3_f32 v{vM[i]}, v{S[i]+r}, v{S[i]+r+1}, v{vM[i]}")
    a.label("Lattn_havemax")
    for i in range(NQ):
        a(f"v_mov_b32 v{vT}, v{vM[i]}")
        a("s_nop 1")
        a(f"v_permlane32_swap_b32 v{vM[i]}, v{vT}")
        a("s_nop 1")
        a(f"v_max_f32 v{vM[i]}, v{vM[i]}, v{vT}")
        a(f"v_xor_b32 v{vM[i]}, 0x80000000, v{vM[i]}")
        a(f"v_and_b32 v{vM[i]}, 0xffff0000, v{vM[i]}")
    a(f"s_mov_b64 exec, s[{MHI}:{MHI+1}]")
    for i in range(NQ):
        a(f"v_lshrrev_b32 v{Qr[i]}, 16, v{vM[i]}")
    a("s_mov_b64 exec, -1")
    for i in range(NQ):
        for r in range(16): a(f"v_add_f32 v{S[i]+r}, v{S[i]+r}, v{vM[i]}")
    if prof:
        a("s_memtime s[44:45]"); a("s_waitcnt lgkmcnt(0)")
    if prio: a("s_setprio 3")
    KD = 2
    st={'next':N1}
    def chunk(kind):
        for t in range(8):
            for sub in range(NQ):
                u=t*NQ+sub
                cur=S[u%NSB]; nxt=S[(u+DQ)%NSB]; prv=S[(u-1)%NSB]
                pt,psub=divmod(u-1+8*NQ,NQ)
                nt,nsub=divmod(u+DQ,NQ)
                def e(i): a(f"v_exp_f32 v{cur+i}, v{cur+i}")
                a.c(f"--- tile {t} sub {sub}")
                e(0); e(1)
                a(f"v_smfmac_f32_32x32x32_bf16 {vr(O[psub],16)}, {vr(V[pt%2]+4,4)}, {vr(prv+8,8)}, v{vIDX}")
                e(2); e(3)
                if kind==0:
                    nd = 2 if (NSTEP-st['next']) > (8*NQ-u) else 1
                    for _ in range(nd):
                        if st['next']<NSTEP:
                            dma(st['next']); st['next']+=1
                e(4); e(5)
                if sub==0: a("s_waitcnt lgkmcnt(0)")
                krb=Kr[(nt>>1)%2]+2*(nt&1)
                a(f"v_mfma_f32_32x32x8_bf16 {vr(nxt,16)}, {vr(krb,2)}, {vr(Qr[nsub],2)}, 0")
                e(6); e(7); e(8); e(9)
                a(f"v_mfma_f32_32x32x16_bf16 {vr(nxt,16)}, {vr(Km[nt%2],4)}, {vr(Qm[nsub],4)}, {vr(nxt,16)}")
                e(10); e(11); e(12); e(13)
                if sub==0:
                    kt=t+KD
                    if kt==8:
                        if kind==0:
                            a(f"s_waitcnt vmcnt({st['next']-steps_needed(2)})")
                            a("s_barrier")
                            if prof: a("s_memtime s[56:57]")
                        if kind==1:
                            a("s_waitcnt vmcnt(0)")
                            a("s_barrier")
                            if prof: a("s_memtime s[58:59]")
                            a(f"s_cmp_ge_u32 s{sF}, 1600")
                            a("s_cbranch_scc1 Lattn_nowt")
                            a(f"s_lshl_b32 s16, s{sF}, 10")
                            a(f"s_add_u32 s16, s16, {WS_WT}")
                            for ee in range(4): a(f"v_lshl_or_b32 v{WT+ee}, v{WT+2*ee+1}, 16, v{WT+2*ee}")
                            a(f"buffer_store_dwordx4 {vr(WT,4)}, v{vL16}, s[8:11], s16 offen")
                            a.label("Lattn_nowt")
                        a(f"v_add_u32 v{vKr}, {CHUNK}, v{vKr}")
                    a(f"s_mov_b64 exec, s[{MV}:{MV+1}]")
                    vt=t+1
                    voff = vt*1280 if vt<8 else CHUNK+(vt-8)*1280
                    a(f"ds_read_b128 {vr(V[vt%2],4)}, v{vV} offset:{voff}")
                    a(f"v_smfmac_f32_32x32x32_bf16 {vr(O[sub],16)}, {vr(V[t%2],4)}, {vr(cur,8)}, v{vIDX}")
                    a(f"ds_read_b128 {vr(V[vt%2]+4,4)}, v{vV} offset:{voff+640}")
                    if kt%2==0:
                        a(f"s_mov_b64 exec, s[{MLO}:{MLO+1}]")
                        j=kt%8
                        a(f"ds_read2_b64 {vr(Kr[(kt>>1)%2],4)}, v{vKr} offset0:{32*j} offset1:{32*j+32}")
                    a("s_mov_b64 exec, -1")
                    koff = kt*1024 if kt<8 else CHUNK+(kt-8)*1024
                    a(f"ds_read_b128 {vr(Km[kt%2],4)}, v{vKm} offset:{koff}")
                else:
                    a(f"v_smfmac_f32_32x32x32_bf16 {vr(O[sub],16)}, {vr(V[t%2],4)}, {vr(cur,8)}, v{vIDX}")
                e(14); e(15)
        a(f"v_add_u32 v{vKm}, {CHUNK}, v{vKm}")
        a(f"v_add_u32 v{vV}, {CHUNK}, v{vV}")
    a(f"s_cmp_lg_u32 s{sRETRY}, 0")
    a("s_cbranch_scc1 Lattn_loop")
    a.label("Lattn_peel")
    chunk(0)
    assert st['next']==NSTEP
    for ee in range(8):
        a(f"buffer_load_ushort v{WT+ee}, v{vWA if ee<4 else vWB}, s[36:39], s34 offen offset:{(ee&3)*1280}")
    chunk(1)
    a(f"s_mov_b32 s{sCH}, 2")
    a(".p2align 6")
    a.label("Lattn_loop")
    chunk(2)
    a(f"s_add_u32 s{sCH}, s{sCH}, 1")
    if prio:
        a(f"s_cmp_lt_u32 s{sCH}, 5")
        a("s_cbranch_scc1 Lattn_loop")
        a("s_setprio 2")
        a(f"s_cmp_eq_u32 s{sCH}, 5")
        a("s_cbranch_scc1 Lattn_loop")
        a("s_setprio 1")
        a(f"s_cmp_eq_u32 s{sCH}, 6")
        a("s_cbranch_scc1 Lattn_loop")
        a("s_setprio 0")
    a(f"s_cmp_lt_u32 s{sCH}, 8")
    a("s_cbranch_scc1 Lattn_loop")
    a.label("Lattn_loopend")
    lastu=8*NQ-1
    a(f"v_smfmac_f32_32x32x32_bf16 {vr(O[NQ-1],16)}, {vr(V[7%2]+4,4)}, {vr(S[lastu%NSB]+8,8)}, v{vIDX}")
    a("s_waitcnt lgkmcnt(0)")
    if prof:
        a("s_memtime s[46:47]"); a("s_waitcnt lgkmcnt(0)")
    a(f"s_lshr_b32 s16, s{sHQ}, 1")
    a("s_mul_i32 s16, s16, 2560")
    a(f"s_mul_i32 s17, s{sQT}, 81920")
    a("s_add_u32 s16, s16, s17")
    a(f"s_add_u32 s16, s16, {WS_O}")
    a(f"s_and_b32 s17, s{sHQ}, 1")
    a("s_lshl_b32 s23, s17, 10")
    a("s_add_u32 s23, s23, s16")
    a("s_lshl_b32 s17, s17, 3")
    a("s_add_u32 s16, s16, s17")
    a("s_add_u32 s16, s16, 2048")
    a(f"v_mov_b32 v{vT}, 0x5d800000")
    a("s_mov_b64 s[30:31], -1")
    a("s_nop 3")
    for i in range(NQ):
        a(f"s_mov_b64 exec, s[{MHI}:{MHI+1}]")
        a(f"v_mov_b32 v{O[i]+12}, v{O[i]+8}")
        a("s_mov_b64 exec, -1")
        a(f"v_cmp_lt_f32 vcc, v{O[i]+12}, v{vT}")
        a("s_nop 1")
        a("s_and_b64 s[30:31], s[30:31], vcc")
    a("s_cmp_eq_u64 s[30:31], -1")
    a("s_cbranch_scc0 Lattn_fallback")
    a.label("Lattn_ok")
    for i in range(NQ):
        a(f"v_rcp_f32 v{vT}, v{O[i]+12}")
        a("s_nop 0")
        a(f"v_mul_f32 v{vT}, v{vT}, v{vG[i]}")
        for r in range(12): a(f"v_mul_f32 v{O[i]+r}, v{O[i]+r}, v{vT}")
        for r in range(6): a(f"v_cvt_pk_bf16_f32 v{S[i]+r}, v{O[i]+2*r}, v{O[i]+2*r+1}")
        a(f"buffer_store_dwordx4 {vr(S[i],4)}, v{vL16}, s[8:11], s23 offen")
        a(f"s_mov_b64 exec, s[{MLO}:{MLO+1}]")
        a(f"buffer_store_dwordx2 {vr(S[i]+4,2)}, v{vL16}, s[8:11], s16 offen")
        a("s_mov_b64 exec, -1")
        if i<NQ-1:
            a("s_add_u32 s23, s23, 81920")
            a("s_add_u32 s16, s16, 81920")
    if prof: prof_end(a,40,50,52,8,sW,NW,0,mids=(42,44,56,58,46))
    a.label("Lattn_end")
    a("s_endpgm")
    a.label("Lattn_fallback")
    a(f"s_cmp_lg_u32 s{sRETRY}, 0")
    a("s_cbranch_scc1 Lattn_ok")
    a(f"s_mov_b32 s{sRETRY}, 1")
    a(f"s_mov_b64 exec, s[{MHI}:{MHI+1}]")
    for i in range(NQ):
        a(f"v_mov_b32 v{Qr[i]}, 0")
    a("s_mov_b64 exec, -1")
    for i in range(NQ): a(f"v_mov_b32 v{vM[i]}, 0xff800000")
    a(f"s_mov_b32 s{sT}, 0")
    a.label("Lattn_mloop")
    a(f"s_lshr_b32 s23, s{sT}, 3")
    a(f"s_mul_i32 s23, s23, {CHUNK}")
    a(f"s_and_b32 s{sT2}, s{sT}, 7")
    a(f"s_lshl_b32 s30, s{sT2}, 10")
    a("s_add_u32 s30, s30, s23")
    a(f"s_lshl_b32 s31, s{sT2}, 8")
    a("s_add_u32 s31, s31, s23")
    a(f"v_add_u32 v{vT}, s30, v{vL16}")
    a(f"v_add_u32 v{vT2}, s31, v{vR8}")
    a(f"ds_read_b128 {vr(Km[0],4)}, v{vT}")
    a(f"s_mov_b64 exec, s[{MLO}:{MLO+1}]")
    a(f"ds_read_b64 {vr(Kr[0],2)}, v{vT2} offset:8192")
    a("s_mov_b64 exec, -1")
    a("s_waitcnt lgkmcnt(0)")
    for i in range(NQ):
        a(f"v_mfma_f32_32x32x8_bf16 {vr(S[i],16)}, {vr(Kr[0],2)}, {vr(Qr[i],2)}, 0")
        a(f"v_mfma_f32_32x32x16_bf16 {vr(S[i],16)}, {vr(Km[0],4)}, {vr(Qm[i],4)}, {vr(S[i],16)}")
    a("s_nop 15")
    for i in range(NQ):
        for r in range(0,16,2):
            a(f"v_max3_f32 v{vM[i]}, v{S[i]+r}, v{S[i]+r+1}, v{vM[i]}")
    a(f"s_add_u32 s{sT}, s{sT}, 1")
    a(f"s_cmp_lt_u32 s{sT}, 64")
    a("s_cbranch_scc1 Lattn_mloop")
    a("s_branch Lattn_zero")
    txt=a.text()
    if var:
        head,rest=txt.split("Lattn_peel:",1)
        body,tail=rest.split("Lattn_loopend:",1)
        L=body.split("\n")
        if 'nosm' in var: L=[x for x in L if 'v_smfmac' not in x]
        if 'noqk' in var: L=[x for x in L if 'v_mfma' not in x]
        if 'noexp' in var: L=[x for x in L if 'v_exp' not in x]
        if 'nods' in var: L=[x for x in L if 'ds_read' not in x]
        if 'noexec' in var: L=[x for x in L if 'exec' not in x]
        if 'nowait' in var: L=[x for x in L if 'lgkmcnt' not in x]
        txt=head+"Lattn_peel:"+"\n".join(L)+"Lattn_loopend:"+tail
        txt=txt.replace("s_cbranch_scc0 Lattn_fallback","s_nop 0",1)
    return txt, NV, 64*NW
```

```python
from gen_common import *

def gen_out(prof=False, rot=1):
    a=A()
    SWS=8; SO=12
    sMB=16; sNB=17; sWv=18; sT=19; sT2=20; sOB=21; sWB=22
    vLane=1; vOo=2; vWo=3; vT=4; vT2=5; vQ=6; vI=7; vL16=8; vSt=9
    NKS=10
    PD=globals().get('OUT_PD',3)
    NB=PD+1
    def frag(j,i):
        return ("v",16+(j%NB)*36+i*4)
    def R(t,n): return f"{t[0]}[{t[1]}:{t[1]+n-1}]"
    a("s_cmp_ge_u32 s2, 256")
    a("s_cbranch_scc1 Lout_end")
    a("s_load_dwordx2 s[4:5], s[0:1], 88")
    a("s_load_dwordx2 s[6:7], s[0:1], 72")
    if prof: prof_start(a,64,66)
    a(f"v_and_b32 v{vLane}, 63, v0")
    a(f"v_lshrrev_b32 v{vT}, 6, v0")
    a(f"v_lshlrev_b32 v{vL16}, 4, v{vLane}")
    a(f"v_readfirstlane_b32 s{sWv}, v{vT}")
    a(f"v_lshrrev_b32 v{vQ}, 4, v{vLane}")
    a(f"v_and_b32 v{vI}, 15, v{vLane}")
    a(f"s_and_b32 s{sT}, s2, 7")
    a(f"s_lshr_b32 s{sT2}, s2, 3")
    a(f"s_lshr_b32 s{sMB}, s{sT}, 1")
    a(f"s_lshl_b32 s{sMB}, s{sMB}, 3")
    a(f"s_and_b32 s23, s{sT2}, 7")
    a(f"s_add_u32 s{sMB}, s{sMB}, s23")
    a(f"s_and_b32 s{sNB}, s{sT}, 1")
    a(f"s_lshl_b32 s{sNB}, s{sNB}, 2")
    a(f"s_lshr_b32 s{sT2}, s{sT2}, 3")
    a(f"s_add_u32 s{sNB}, s{sNB}, s{sT2}")
    a(f"v_lshlrev_b32 v{vOo}, 9, v{vQ}")
    a(f"v_lshl_add_u32 v{vOo}, v{vI}, 4, v{vOo}")
    a(f"s_mul_i32 s{sOB}, s{sMB}, {2*81920}")
    a(f"s_mul_i32 s{sT}, s{sWv}, {NKS*2048}")
    a(f"s_add_u32 s{sOB}, s{sOB}, s{sT}")
    a(f"s_add_u32 s{sOB}, s{sOB}, {WS_O}")
    a(f"s_add_u32 s24, s{sOB}, 81920")
    a(f"s_mul_i32 s{sWB}, s{sNB}, {40*5120}")
    a(f"s_mul_i32 s{sT}, s{sWv}, {NKS*5120}")
    a(f"s_add_u32 s{sWB}, s{sWB}, s{sT}")
    a(f"s_add_u32 s{sWB}, s{sWB}, {WS_WT}")
    a(f"s_and_b32 s26, s{sMB}, 7")
    a(f"s_and_b32 s27, s{sNB}, 3")
    a("s_mul_i32 s27, s27, 3")
    a("s_add_u32 s26, s26, s27")
    a("s_cmp_ge_u32 s26, 10")
    a("s_cselect_b32 s27, 10, 0")
    a("s_sub_u32 s26, s26, s27")
    if not rot: a("s_mov_b32 s26, 0")
    if rot==2:
        a(f"s_add_u32 s26, s{sMB}, s{sNB}"); a("s_and_b32 s26, s26, 1"); a("s_mul_i32 s26, s26, 5")
    if rot==3:
        a(f"s_and_b32 s26, s{sMB}, 3")
    a("s_lshl_b32 s27, s26, 11")
    a(f"s_add_u32 s{sOB}, s{sOB}, s27")
    a("s_add_u32 s24, s24, s27")
    a("s_mul_i32 s27, s26, 5120")
    a(f"s_add_u32 s{sWB}, s{sWB}, s27")
    a(f"s_add_u32 s25, s{sWB}, 4096")
    a(f"s_mov_b32 s{SWS+2}, {WS_END}"); a(f"s_mov_b32 s{SWS+3}, 0x00020000")
    a(f"s_mov_b32 s{SO+2}, {2048*1280}"); a(f"s_mov_b32 s{SO+3}, 0x00020000")
    a("s_waitcnt lgkmcnt(0)")
    a(f"s_mov_b32 s{SWS}, s4"); a(f"s_mov_b32 s{SWS+1}, s5")
    a(f"s_mov_b32 s{SO}, s6"); a(f"s_mov_b32 s{SO+1}, s7")
    a("s_movk_i32 s28, 2048"); a("s_movk_i32 s29, 5120")
    def loads(j):
        for s in range(4):
            so = sOB if s<2 else 24
            a(f"buffer_load_dwordx4 {R(frag(j,s),4)}, v{vOo}, {sr(SWS,4)}, s{so} offen offset:{(s&1)*256}")
        for t in range(5):
            if t<4: a(f"buffer_load_dwordx4 {R(frag(j,4+t),4)}, v{vL16}, {sr(SWS,4)}, s{sWB} offen offset:{t*1024}")
            else: a(f"buffer_load_dwordx4 {R(frag(j,4+t),4)}, v{vL16}, {sr(SWS,4)}, s25 offen")
        if j<NKS-1:
            a("s_add_u32 s26, s26, 1")
            a("s_cmp_eq_u32 s26, 10")
            a(f"s_cselect_b32 s27, {-9*2048}, s28")
            a(f"s_add_u32 s{sOB}, s{sOB}, s27"); a("s_add_u32 s24, s24, s27")
            a("s_cmp_eq_u32 s26, 10")
            a(f"s_cselect_b32 s27, {-9*5120}, s29")
            a(f"s_add_u32 s{sWB}, s{sWB}, s27"); a("s_add_u32 s25, s25, s27")
    def cap(fn,*args):
        n=len(a.l); fn(*args); r=[x.strip() for x in a.l[n:]]; del a.l[n:]; return r
    for j in range(PD): loads(j)
    for j in range(NKS):
        a(f"s_waitcnt vmcnt({9*(min(NKS-1,j+PD-1)-j)})")
        if prof and j==0: a("s_memtime s[68:69]")
        ms=[]
        for s in range(4):
            for t in range(5):
                acc=(s*5+t)*4
                c = "0" if j==0 else f"a[{acc}:{acc+3}]"
                ms.append(f"v_mfma_f32_16x16x32_bf16 a[{acc}:{acc+3}], {R(frag(j,4+t),4)}, {R(frag(j,s),4)}, {c}")
        fill=cap(loads,j+PD) if j+PD<NKS else []
        lds_=[x for x in fill if x.startswith("buffer")]; rest=[x for x in fill if not x.startswith("buffer")]
        for i,m in enumerate(ms):
            if i%2==0 and i//2<len(lds_): a(lds_[i//2])
            a(m)
        for x in rest: a(x)
    a("s_nop 7")
    if prof: a("s_memtime s[70:71]")
    for s in range(4):
        a(f"s_sub_u32 s{sT}, s{sWv}, {s+1}")
        a(f"s_and_b32 s{sT}, s{sT}, 3")
        a(f"s_cmp_eq_u32 s{sT}, 3")
        a(f"s_cbranch_scc1 Lout_skip{s}")
        a(f"s_mul_i32 s{sT}, s{sT}, 5120")
        a(f"v_add_u32 v{vT}, s{sT}, v{vL16}")
        for t in range(5):
            acc=(s*5+t)*4
            a(f"ds_write_b128 v{vT}, a[{acc}:{acc+3}] offset:{s*15360+t*1024}")
        a(f"s_branch Lout_next{s}")
        a.label(f"Lout_skip{s}")
        for r in range(20): a(f"v_accvgpr_read_b32 v{16+r}, a{s*20+r}")
        a.label(f"Lout_next{s}")
    a(f"s_mul_i32 s{sT}, s{sWv}, 15360")
    a(f"v_add_u32 v{vT}, s{sT}, v{vL16}")
    a(f"s_lshl_b32 s{sT}, s{sMB}, 6")
    a(f"s_lshl_b32 s{sT2}, s{sWv}, 4")
    a(f"s_add_u32 s{sT}, s{sT}, s{sT2}")
    a(f"s_mul_i32 s{sT}, s{sT}, 1280")
    a(f"s_mul_i32 s{sT2}, s{sNB}, 160")
    a(f"s_add_u32 s{sT}, s{sT}, s{sT2}")
    a(f"v_mul_u32_u24 v{vSt}, 1280, v{vI}")
    a(f"v_lshl_add_u32 v{vT2}, v{vQ}, 3, v{vSt}")
    a(f"v_lshl_add_u32 v{vSt}, v{vQ}, 4, v{vSt}")
    a("s_waitcnt lgkmcnt(0)")
    a("s_barrier")
    for sl in range(3):
        for t in range(5):
            a(f"ds_read_b128 {vr(40+sl*20+t*4,4)}, v{vT} offset:{sl*5120+t*1024}")
    for sl in range(3):
        a(f"s_waitcnt lgkmcnt({10-5*sl})")
        for r in range(20): a(f"v_add_f32 v{16+r}, v{16+r}, v{40+sl*20+r}")
    for i in range(10): a(f"v_cvt_pk_bf16_f32 v{100+i}, v{16+2*i}, v{17+2*i}")
    a(f"buffer_store_dwordx4 v[100:103], v{vSt}, {sr(SO,4)}, s{sT} offen")
    a(f"buffer_store_dwordx4 v[104:107], v{vSt}, {sr(SO,4)}, s{sT} offen offset:64")
    a(f"buffer_store_dwordx2 v[108:109], v{vT2}, {sr(SO,4)}, s{sT} offen offset:128")
    if prof: prof_end(a,64,66,72,SWS,sWv,4,0x80000,mids=(68,70))
    a.label("Lout_end")
    a("s_endpgm")
    return a.text(), (16+NB*36,16+NB*36+80), 256, 256, 61440
```

```python
from gen_common import *

def gen_out(prof=False, rot=0, PD=2):
    a=A()
    SWS=8; SO=12
    sMB=16; sNB=17; sWv=18; sT=19; sT2=20; sOB=21; sWB=22; sM=23
    vLane=1; vOo=2; vT=4; vT2=5; vQ=6; vI=7; vL16=8; vSt=9
    NST=10; NBUF=PD+1; STG=20480
    ACC=16
    FW=[36,56]
    FO=[76+16*i for i in range(NBUF)]
    NV=76+16*NBUF
    a("s_cmp_ge_u32 s2, 256")
    a("s_cbranch_scc1 Lout_end")
    a("s_load_dwordx2 s[4:5], s[0:1], 88")
    a("s_load_dwordx2 s[6:7], s[0:1], 72")
    if prof: prof_start(a,64,66)
    a(f"v_and_b32 v{vLane}, 63, v0")
    a(f"v_lshrrev_b32 v{vT}, 6, v0")
    a(f"v_lshlrev_b32 v{vL16}, 4, v{vLane}")
    a(f"v_readfirstlane_b32 s{sWv}, v{vT}")
    a(f"v_lshrrev_b32 v{vQ}, 4, v{vLane}")
    a(f"v_and_b32 v{vI}, 15, v{vLane}")
    a(f"s_and_b32 s{sT}, s2, 7")
    a(f"s_lshr_b32 s{sT2}, s2, 3")
    a(f"s_lshr_b32 s{sMB}, s{sT}, 1")
    a(f"s_lshl_b32 s{sMB}, s{sMB}, 3")
    a(f"s_and_b32 s24, s{sT2}, 7")
    a(f"s_add_u32 s{sMB}, s{sMB}, s24")
    a(f"s_and_b32 s{sNB}, s{sT}, 1")
    a(f"s_lshl_b32 s{sNB}, s{sNB}, 2")
    a(f"s_lshr_b32 s{sT2}, s{sT2}, 3")
    a(f"s_add_u32 s{sNB}, s{sNB}, s{sT2}")
    a(f"v_lshlrev_b32 v{vOo}, 9, v{vQ}")
    a(f"v_lshl_add_u32 v{vOo}, v{vI}, 4, v{vOo}")
    a(f"s_mul_i32 s{sOB}, s{sMB}, {2*81920}")
    a(f"s_lshr_b32 s{sT}, s{sWv}, 1")
    a(f"s_mul_i32 s{sT}, s{sT}, 81920")
    a(f"s_add_u32 s{sOB}, s{sOB}, s{sT}")
    a(f"s_and_b32 s{sT}, s{sWv}, 1")
    a(f"s_lshl_b32 s{sT}, s{sT}, 8")
    a(f"s_add_u32 s{sOB}, s{sOB}, s{sT}")
    a(f"s_add_u32 s{sOB}, s{sOB}, {WS_O}")
    a(f"s_add_u32 s24, s{sOB}, 4096")
    a(f"s_mul_i32 s{sWB}, s{sNB}, {40*5120}")
    a(f"s_mul_i32 s{sM}, s{sWv}, 5120")
    a(f"s_add_u32 s{sWB}, s{sWB}, s{sM}")
    a(f"s_add_u32 s{sWB}, s{sWB}, {WS_WT}")
    a(f"s_add_u32 s25, s{sWB}, 4096")
    a(f"s_mov_b32 s{SWS+2}, {WS_END}"); a(f"s_mov_b32 s{SWS+3}, 0x00020000")
    a(f"s_mov_b32 s{SO+2}, {2048*1280}"); a(f"s_mov_b32 s{SO+3}, 0x00020000")
    a(f"s_mov_b32 m0, s{sM}")
    a("s_waitcnt lgkmcnt(0)")
    a(f"s_mov_b32 s{SWS}, s4"); a(f"s_mov_b32 s{SWS+1}, s5")
    a(f"s_mov_b32 s{SO}, s6"); a(f"s_mov_b32 s{SO+1}, s7")
    def loads(st):
        b=st%NBUF
        g=[]
        for t in range(5):
            pre=[]
            if t==0: pre=[f"s_add_u32 m0, s{sM}, {b*STG}","s_nop 0"]
            if t==4: pre=[f"s_add_u32 m0, s{sM}, {b*STG+4096}","s_nop 0"]
            if t<4: g.append(pre+[f"buffer_load_dwordx4 v{vL16}, {sr(SWS,4)}, s{sWB} offen offset:{t*1024} lds"])
            else: g.append(pre+[f"buffer_load_dwordx4 v{vL16}, {sr(SWS,4)}, s25 offen lds",
                                f"s_add_u32 s{sWB}, s{sWB}, {STG}", f"s_add_u32 s25, s25, {STG}"])
        for ks in range(4):
            so = sOB if ks<2 else 24
            x=[f"buffer_load_dwordx4 {vr(FO[b]+4*ks,4)}, v{vOo}, {sr(SWS,4)}, s{so} offen offset:{(ks&1)*2048}"]
            if ks==3: x+=[f"s_add_u32 s{sOB}, s{sOB}, 8192", "s_add_u32 s24, s24, 8192"]
            g.append(x)
        return g
    for st in range(PD):
        for g in loads(st):
            for x in g: a(x)
    a(f"s_lshl_b32 s{sT}, s{sMB}, 6")
    a(f"s_lshl_b32 s{sT2}, s{sWv}, 4")
    a(f"s_add_u32 s{sT}, s{sT}, s{sT2}")
    a(f"s_mul_i32 s{sT}, s{sT}, 1280")
    a(f"s_mul_i32 s{sT2}, s{sNB}, 160")
    a(f"s_add_u32 s{sT}, s{sT}, s{sT2}")
    a(f"v_mul_u32_u24 v{vSt}, 1280, v{vI}")
    a(f"v_lshl_add_u32 v{vT2}, v{vQ}, 3, v{vSt}")
    a(f"v_lshl_add_u32 v{vSt}, v{vQ}, 4, v{vSt}")
    a(f"v_add_u32 v{vT}, 40960, v{vL16}")
    def rd(st,ks):
        b=st%NBUF; off=b*STG+ks*5120
        base=vL16
        if off+4096>65535: base=vT; off-=40960
        return [f"ds_read_b128 {vr(FW[ks%2]+4*t,4)}, v{base} offset:{off+t*1024}" for t in range(5)]
    for st in range(NST):
        a(f"s_waitcnt vmcnt({9*(min(NST-1,st+PD-1)-st)})")
        a("s_barrier")
        if prof and st==0: a("s_memtime s[68:69]"); a("s_waitcnt lgkmcnt(0)")
        G=loads(st+PD) if st+PD<NST else []
        for x in rd(st,0): a(x)
        gi=0
        for ks in range(4):
            nxt = rd(st,ks+1) if ks<3 else []
            for x in nxt: a(x)
            for _ in range(2 if ks>0 else 3):
                if gi<len(G):
                    for x in G[gi]: a(x)
                    gi+=1
            a(f"s_waitcnt lgkmcnt({len(nxt)})")
            for t in range(5):
                c="0" if (st==0 and ks==0) else vr(ACC+4*t,4)
                a(f"v_mfma_f32_16x16x32_bf16 {vr(ACC+4*t,4)}, {vr(FW[ks%2]+4*t,4)}, {vr(FO[st%NBUF]+4*ks,4)}, {c}")
        assert gi==len(G)
    if prof: a("s_memtime s[70:71]")
    a("s_nop 7")
    for i in range(10): a(f"v_cvt_pk_bf16_f32 v{FW[0]+i}, v{ACC+2*i}, v{ACC+2*i+1}")
    a(f"buffer_store_dwordx4 {vr(FW[0],4)}, v{vSt}, {sr(SO,4)}, s{sT} offen")
    a(f"buffer_store_dwordx4 {vr(FW[0]+4,4)}, v{vSt}, {sr(SO,4)}, s{sT} offen offset:64")
    a(f"buffer_store_dwordx2 {vr(FW[0]+8,2)}, v{vT2}, {sr(SO,4)}, s{sT} offen offset:128")
    if prof: prof_end(a,64,66,72,SWS,sWv,4,0x80000,mids=(68,70))
    a.label("Lout_end")
    a("s_endpgm")
    return a.text(), NV, 256, 256, NBUF*STG
```

```python
import sys, argparse
from gen_common import *
from gen_attn import gen_attn
HDR=open('gated_mix__grouped_kv_mqa__mha_block__prompt.s.ref').read().split('; Override launch')[0]

def kd(name,nv,ns=96):
    if isinstance(nv,tuple): acc,nv=nv
    else: acc=(nv+3)//4*4
    return f""".p2align 6
.amdhsa_kernel {name}
  .amdhsa_next_free_vgpr {nv}
  .amdhsa_next_free_sgpr {ns}
  .amdhsa_accum_offset {acc}
  .amdhsa_group_segment_fixed_size 0
  .amdhsa_kernarg_size 96
  .amdhsa_user_sgpr_count 2
  .amdhsa_user_sgpr_kernarg_segment_ptr 1
  .amdhsa_system_sgpr_workgroup_id_x 1
.end_amdhsa_kernel
"""
def build(kernels):
    o=HDR
    for n,t,nv,g,b,l in kernels:
        o+=f"; @launch kernel={n} grid=({g},1,1) block=({b},1,1) lds={l}\n"
    o+='.amdgcn_target "amdgcn-amd-amdhsa--gfx950"\n.text\n'
    for n,t,nv,g,b,l in kernels:
        o+=f".globl {n}\n.p2align 8\n.type {n},@function\n{n}:\n{t}\n"
    o+='.section .rodata,"a"\n'
    for n,t,nv,g,b,l in kernels:
        o+=kd(n,nv)
    return o
if __name__=="__main__":
    ap=argparse.ArgumentParser()
    ap.add_argument("--nq",type=int,default=1)
    ap.add_argument("--only",default="")
    ap.add_argument("--prof",action="store_true")
    ap.add_argument("--var",default="")
    ap.add_argument("--outv",type=int,default=2)
    ap.add_argument("--pd",type=int,default=2)
    ap.add_argument("--sto",default="same")
    ap.add_argument("--st",default="sc0_sc1")
    ap.add_argument("--wsoff",type=int,default=0)
    ap.add_argument("--dbgk",action="store_true")
    ap.add_argument("--rot",type=int,default=0)
    ap.add_argument("--roto",type=int,default=0)
    ap.add_argument("--prio",type=int,default=1)
    ap.add_argument("--zrows",type=int,default=1)
    ap.add_argument("-o",default="gated_mix__grouped_kv_mqa__mha_block__prompt.s")
    args=ap.parse_args()
    ks=[]
    if args.only in ("","proj"):
        try:
            from gen_proj import gen_proj
            t,nv,g,b,l=gen_proj(prof=args.prof,rot=args.rot,var=args.var); ks.append(("proj_kernel",t,nv,g,b,l))
        except ImportError: pass
    if args.only in ("","attn"):
        t,nv,b=gen_attn(args.nq,prof=args.prof,var=args.var,prio=args.prio,zrows=args.zrows); ks.append(("attn_kernel",t,nv,256,b,163840))
    if args.only in ("","out"):
        try:
            import gen_out as _go; _go.OUT_PD=args.pd
            from gen_out import gen_out
            if args.outv==2:
                import gen_out2; t,nv,g,b,l=gen_out2.gen_out(prof=args.prof,PD=args.pd)
            else: t,nv,g,b,l=gen_out(prof=args.prof,rot=args.roto)
            pass; ks.append(("out_kernel",t,nv,g,b,l))
        except ImportError: pass
    if args.dbgk:
        t=f"""  s_cmp_ge_u32 s2, 1
  s_cbranch_scc1 Ldbg_end
  s_load_dwordx4 s[4:7], s[0:1], 80
  v_and_b32 v1, 3, v0
  v_lshrrev_b32 v2, 2, v0
  v_lshlrev_b32 v1, 2, v1
  ; lane group g=lane>>2 : 0 proj wg0, 1 attn wg0, 2 out wg0, 3 attn last wave of wg 128
  v_mov_b32 v3, {WS_END+0x40000}
  v_cmp_eq_u32 vcc, 1, v2
  v_mov_b32 v4, {WS_END}
  s_nop 1
  v_cndmask_b32 v3, v3, v4, vcc
  v_cmp_eq_u32 vcc, 2, v2
  v_mov_b32 v4, {WS_END+0x80000}
  s_nop 1
  v_cndmask_b32 v3, v3, v4, vcc
  v_cmp_eq_u32 vcc, 3, v2
  v_mov_b32 v4, {WS_END+(128*16+15)*32}
  s_nop 1
  v_cndmask_b32 v3, v3, v4, vcc
  v_add_u32 v3, v3, v1
  v_lshlrev_b32 v5, 2, v0
  s_waitcnt lgkmcnt(0)
  s_mov_b64 exec, 0xffff
  global_load_dword v6, v3, s[6:7]
  s_waitcnt vmcnt(0)
  global_store_dword v5, v6, s[4:5]
Ldbg_end:
  s_endpgm"""
        ks.append(("dbg_kernel",t,16,1,64,0))
    if args.wsoff:
        def addoff(t):
            L=t.split("\n"); out=[]; done=False
            for x in L:
                out.append(x)
                if not done and x.strip()=="s_waitcnt lgkmcnt(0)":
                    out.append(f"  s_add_u32 s4, s4, {args.wsoff<<20}"); out.append("  s_addc_u32 s5, s5, 0"); done=True
            return "\n".join(out)
        ks=[(n,addoff(t),nv,g,b,l) for n,t,nv,g,b,l in ks]
    if args.st:
        import re
        def stf(n): return (args.st if (n!="out_kernel" or args.sto=="same") else args.sto).replace("_"," ").replace("none","")
        ks=[(n,"\n".join((x+" "+stf(n)) if x.strip().startswith("buffer_store") else x for x in t.split("\n")),nv,g,b,l) for n,t,nv,g,b,l in ks]
    open(args.o,"w").write(build(ks))
```

```python
from gen_common import *

def gen_attn(NQ=1, prof=False, var='', prio=1, zrows=1, pf=1, early=1):
    NW=16//NQ
    NSTEP=160//NW
    a=A()
    NSB = 2 if NQ==1 else 4
    DQ = NSB//2
    S=[16+16*i for i in range(NSB)]
    p=16+16*NSB
    O=[p+16*i for i in range(NQ)]
    p+=16*NQ
    Qm=[p+4*i for i in range(NQ)]; p+=4*NQ
    Km=[p,p+4]; p+=8
    Kr=[p,p+4]; p+=8
    V=[p,p+8]; p+=16
    Qr=[p+2*i for i in range(NQ)]; p+=2*NQ
    WT=p; p+=8
    vWA=p; vWB=p+1; p+=2
    NV=p
    vIDX=1; vKm=2; vKr=3; vV=4; vL16=5; vG=[6,7]; vT=8; vT2=9; vM=[10,11]; vLane=12; vR8=13
    sHQ=12; sQB=13; sKV=14; sW=15; sT=16; sT2=17; sCH=18; sSYNC=19; sRETRY=20; sQT=22
    MV=24; MLO=26; MHI=28; sM0=32; sSRC=33
    def steps_needed(nchunks): return -(-(20*nchunks)//NW)
    a("s_cmp_ge_u32 s2, 256")
    a("s_cbranch_scc1 Lattn_end")
    a("s_load_dwordx2 s[4:5], s[0:1], 88")
    a("s_load_dwordx2 s[6:7], s[0:1], 32")
    a("s_load_dwordx2 s[38:39], s[0:1], 56")
    if prof:
        a("s_memtime s[40:41]"); a("s_memrealtime s[50:51]")
    a(f"v_and_b32 v{vLane}, 63, v0")
    a(f"v_lshrrev_b32 v{vT}, 6, v0")
    a(f"v_lshlrev_b32 v{vL16}, 4, v{vLane}")
    a(f"v_readfirstlane_b32 s{sW}, v{vT}")
    a("s_and_b32 s16, s2, 7")
    a("s_lshr_b32 s17, s2, 3")
    a(f"s_and_b32 s{sQB}, s17, 3")
    a("s_lshr_b32 s17, s17, 2")
    a("s_lshl_b32 s16, s16, 2")
    a("s_and_b32 s23, s17, 3")
    a("s_add_u32 s16, s16, s23")
    a("s_lshr_b32 s17, s17, 2")
    a("s_lshl_b32 s23, s17, 5")
    a(f"s_add_u32 s{sHQ}, s16, s23")
    a("s_cmp_eq_u32 s17, 0")
    a(f"s_cselect_b32 s{sKV}, 32, s16")
    a(f"s_mul_i32 s{sKV}, s{sKV}, {KV_BYTES}")
    a(f"s_add_u32 s{sKV}, s{sKV}, {WS_KV}")
    a(f"s_lshl_b32 s{sM0}, s{sW}, 10")
    a(f"s_add_u32 s{sSRC}, s{sM0}, s{sKV}")
    a(f"s_lshl_b32 s{sQT}, s{sQB}, 4")
    a(f"s_mul_i32 s16, s{sW}, {NQ}")
    a(f"s_add_u32 s{sQT}, s{sQT}, s16")
    a(f"v_and_b32 v{vT}, 31, v{vLane}")
    a(f"v_lshlrev_b32 v{vR8}, 3, v{vT}")
    a(f"v_lshlrev_b32 v{vT2}, 2, v{vT}")
    a(f"s_mov_b32 s10, {WS_END}")
    a("s_mov_b32 s11, 0x00020000")
    a(f"s_mul_i32 s16, s{sHQ}, {QH_BYTES}")
    a(f"s_lshl_b32 s23, s{sQT}, 10")
    a("s_add_u32 s23, s23, s16")
    a(f"s_lshl_b32 s30, s{sQT}, 8")
    a("s_add_u32 s30, s30, s16")
    a("s_add_u32 s30, s30, 65536")
    a("s_lshl_b32 s31, s17, 13")
    a(f"s_lshl_b32 s16, s{sQT}, 7")
    a("s_add_u32 s31, s31, s16")
    a(f"s_add_u32 s31, s31, {WS_G}")
    a(f"s_mov_b32 m0, s{sM0}")
    a("s_waitcnt lgkmcnt(0)")
    a("s_mov_b32 s8, s4")
    a("s_mov_b32 s9, s5")
    def dma(s):
        a(f"buffer_load_dwordx4 v{vL16}, s[8:11], s{sSRC} offen lds")
        if s<NSTEP-1:
            a(f"s_add_u32 s{sM0}, s{sM0}, {NW*1024}")
            a(f"s_add_u32 s{sSRC}, s{sSRC}, {NW*1024}")
            a(f"s_mov_b32 m0, s{sM0}")
            a("s_nop 0")
    N1=steps_needed(1) if not early else 16//NW
    dma(0)
    for i in range(NQ):
        a(f"buffer_load_dwordx4 {vr(Qm[i],4)}, v{vL16}, s[8:11], s23 offen offset:{1024*i}")
    for i in range(NQ):
        a(f"buffer_load_dwordx2 {vr(Qr[i],2)}, v{vR8}, s[8:11], s30 offen offset:{256*i}")
    for s in range(1,N1): dma(s)
    for i in range(NQ):
        a(f"buffer_load_dword v{vG[i]}, v{vT2}, s[8:11], s31 offen offset:{128*i}")
    sF=21
    a(f"s_mul_i32 s{sF}, s2, {NW}")
    a(f"s_add_u32 s{sF}, s{sF}, s{sW}")
    a(f"s_mul_i32 s16, s{sF}, 5243")
    a("s_lshr_b32 s16, s16, 20")
    a("s_mul_i32 s17, s16, 200")
    a(f"s_sub_u32 s17, s{sF}, s17")
    a("s_mul_i32 s23, s17, 205")
    a("s_lshr_b32 s23, s23, 10")
    a("s_mul_i32 s30, s23, 5")
    a("s_sub_u32 s17, s17, s30")
    a("s_cmp_lt_u32 s23, 20")
    a("s_cselect_b32 s36, s6, s38")
    a("s_cselect_b32 s37, s7, s39")
    a("s_cselect_b32 s30, 0, 20")
    a("s_sub_u32 s23, s23, s30")
    a("s_lshl_b32 s23, s23, 2")
    a(f"s_cmp_lt_u32 s{sF}, 1600")
    a(f"s_cselect_b32 s38, {640*1280}, 0")
    a("s_mov_b32 s39, 0x00020000")
    a(f"v_lshrrev_b32 v{vT}, 4, v{vLane}")
    a(f"v_add_u32 v{vT}, s23, v{vT}")
    a(f"v_mul_u32_u24 v{vT2}, 205, v{vT}")
    a(f"v_lshrrev_b32 v{vT2}, 10, v{vT2}")
    a(f"v_mul_u32_u24 v{vWA}, 5, v{vT2}")
    a(f"v_sub_u32 v{vT}, v{vT}, v{vWA}")
    a(f"v_mul_u32_u24 v{vWA}, 40, v{vT2}")
    a(f"v_lshrrev_b32 v{vT2}, 1, v{vT}")
    a(f"v_mul_u32_u24 v{vT2}, 20, v{vT2}")
    a(f"v_and_b32 v{vWB}, 1, v{vT}")
    a(f"v_lshl_add_u32 v{vT2}, v{vWB}, 3, v{vT2}")
    a(f"v_cmp_eq_u32 vcc, 4, v{vT}")
    a(f"v_mov_b32 v{vWB}, {4*1280}")
    a(f"v_mov_b32 v{vT}, {20*1280}")
    a(f"v_cndmask_b32 v{vT2}, v{vT2}, 16, vcc")
    a(f"v_cndmask_b32 v{vWB}, v{vWB}, v{vT}, vcc")
    a(f"v_add_u32 v{vWA}, v{vWA}, v{vT2}")
    a(f"v_mul_u32_u24 v{vWA}, 1280, v{vWA}")
    a(f"v_and_b32 v{vT}, 15, v{vLane}")
    a(f"v_and_b32 v{vT2}, 12, v{vT}")
    a("s_cmp_lt_u32 s17, 4")
    a("s_cselect_b32 s30, -1, 0")
    a(f"v_and_b32 v{vT2}, s30, v{vT2}")
    a(f"v_add_u32 v{vT}, v{vT}, v{vT2}")
    a("s_lshr_b32 s30, s17, 1")
    a("s_lshl_b32 s30, s30, 5")
    a("s_and_b32 s17, s17, 1")
    a("s_lshl_b32 s17, s17, 2")
    a("s_add_u32 s30, s30, s17")
    a("s_mul_i32 s16, s16, 80")
    a("s_add_u32 s30, s30, s16")
    a("s_lshl_b32 s34, s30, 1")
    a(f"v_lshl_add_u32 v{vWA}, v{vT}, 1, v{vWA}")
    a(f"v_add_u32 v{vWB}, v{vWB}, v{vWA}")
    a(f"s_mov_b32 s{MV}, 0x000fffff")
    a(f"s_mov_b32 s{MV+1}, 0x000fffff")
    a(f"s_mov_b32 s{MLO}, -1")
    a(f"s_mov_b32 s{MLO+1}, 0")
    a(f"s_mov_b32 s{MHI}, 0")
    a(f"s_mov_b32 s{MHI+1}, -1")
    a(f"v_mov_b32 v{vIDX}, 0xdddddddd")
    if zrows:
        a(f"v_mov_b32 v{vT2}, 0")
        a("s_mov_b32 s16, 0x01100000")
        a("s_mov_b32 s17, 0x01100000")
        a("s_mov_b64 exec, s[16:17]")
        a(f"v_mov_b32 v{vT2}, 0x3f803f80")
        a("s_mov_b64 exec, -1")
    else:
        a(f"v_mov_b32 v{vT2}, 0x3f803f80")
    for b in range(2):
        for i in range(8): a(f"v_mov_b32 v{V[b]+i}, v{vT2}")
        a(f"v_mov_b32 v{Kr[b]}, 0x3f803f80"); a(f"v_mov_b32 v{Kr[b]+1}, 0x3f80")
        a(f"v_mov_b32 v{Kr[b]+2}, 0x3f803f80"); a(f"v_mov_b32 v{Kr[b]+3}, 0x3f80")
    a(f"s_mov_b32 s{sSYNC}, 2")
    a(f"s_mov_b32 s{sRETRY}, 0")
    a(f"v_lshrrev_b32 v{vT}, 5, v{vLane}")
    a(f"v_mul_u32_u24 v{vT}, 320, v{vT}")
    a(f"v_lshlrev_b32 v{vT2}, 1, v{vR8}")
    a(f"v_add_u32 v14, v{vT}, v{vT2}")
    a(f"v_add_u32 v14, 10240, v14")
    a.label("Lattn_zero")
    for i in range(NQ):
        for r in range(16): a(f"v_mov_b32 v{O[i]+r}, 0")
    for r in range(8,16): a(f"v_mov_b32 v{S[NSB-1]+r}, 0")
    a(f"s_cmp_lg_u32 s{sRETRY}, 0")
    a("s_cbranch_scc1 Lattn_start")
    a(f"s_waitcnt vmcnt({NQ})")
    a(f"s_mov_b64 exec, s[{MHI}:{MHI+1}]")
    for i in range(NQ):
        a(f"v_mov_b32 v{Qr[i]}, 0"); a(f"v_mov_b32 v{Qr[i]+1}, 0")
    a("s_mov_b64 exec, -1")
    a("s_barrier")
    if prof: a("s_memtime s[42:43]")
    a.label("Lattn_start")
    a(f"v_mov_b32 v{vKm}, v{vL16}")
    a(f"v_add_u32 v{vKr}, 8192, v{vR8}")
    a(f"v_mov_b32 v{vV}, v14")
    a(f"ds_read_b128 {vr(Km[0],4)}, v{vKm}")
    a(f"ds_read_b128 {vr(Km[1],4)}, v{vKm} offset:1024")
    a(f"s_mov_b64 exec, s[{MLO}:{MLO+1}]")
    a(f"ds_read2_b64 {vr(Kr[0],4)}, v{vKr} offset0:0 offset1:32")
    a(f"s_mov_b64 exec, s[{MV}:{MV+1}]")
    a(f"ds_read_b128 {vr(V[0],4)}, v{vV}")
    a(f"ds_read_b128 {vr(V[0]+4,4)}, v{vV} offset:640")
    a("s_mov_b64 exec, -1")
    a("s_waitcnt lgkmcnt(2)")
    for i in range(NQ):
        a(f"v_mfma_f32_32x32x8_bf16 {vr(S[i],16)}, {vr(Kr[0],2)}, {vr(Qr[i],2)}, 0")
        a(f"v_mfma_f32_32x32x16_bf16 {vr(S[i],16)}, {vr(Km[0],4)}, {vr(Qm[i],4)}, {vr(S[i],16)}")
    a(f"s_mov_b32 s{sCH}, 0")
    a(f"s_cmp_lg_u32 s{sRETRY}, 0")
    a("s_nop 9" if NQ==1 else "s_nop 7")
    a("s_cbranch_scc1 Lattn_havemax")
    for i in range(NQ):
        for r in range(0,16,2):
            if r==0: a(f"v_max_f32 v{vM[i]}, v{S[i]+r}, v{S[i]+r+1}")
            else: a(f"v_max3_f32 v{vM[i]}, v{S[i]+r}, v{S[i]+r+1}, v{vM[i]}")
    a.label("Lattn_havemax")
    for i in range(NQ):
        a(f"v_mov_b32 v{vT}, v{vM[i]}")
        a("s_nop 1")
        a(f"v_permlane32_swap_b32 v{vM[i]}, v{vT}")
        a("s_nop 1")
        a(f"v_max_f32 v{vM[i]}, v{vM[i]}, v{vT}")
        a(f"v_xor_b32 v{vM[i]}, 0x80000000, v{vM[i]}")
    a(f"s_mov_b64 exec, s[{MHI}:{MHI+1}]")
    for i in range(NQ):
        a(f"v_and_b32 v{vT}, 0xffff0000, v{vM[i]}")
        a(f"v_sub_f32 v{vT2}, v{vM[i]}, v{vT}")
        a(f"v_and_b32 v{Qr[i]}, 0xffff0000, v{vT2}")
        a(f"v_sub_f32 v{vT2}, v{vT2}, v{Qr[i]}")
        a(f"v_lshrrev_b32 v{Qr[i]+1}, 16, v{vT2}")
        a(f"v_lshrrev_b32 v{vT}, 16, v{vT}")
        a(f"v_or_b32 v{Qr[i]}, v{Qr[i]}, v{vT}")
    a("s_mov_b64 exec, -1")
    for i in range(NQ):
        for r in range(16): a(f"v_add_f32 v{S[i]+r}, v{S[i]+r}, v{vM[i]}")
    if prof:
        a("s_memtime s[44:45]"); a("s_waitcnt lgkmcnt(0)")
    if prio: a("s_setprio 3")
    KD = 2
    st={'next':N1}
    def chunk(kind):
        for t in range(8):
            for sub in range(NQ):
                u=t*NQ+sub
                cur=S[u%NSB]; nxt=S[(u+DQ)%NSB]; prv=S[(u-1)%NSB]
                pt,psub=divmod(u-1+8*NQ,NQ)
                nt,nsub=divmod(u+DQ,NQ)
                def e(i): a(f"v_exp_f32 v{cur+i}, v{cur+i}")
                a.c(f"--- tile {t} sub {sub}")
                e(0); e(1)
                a(f"v_smfmac_f32_32x32x32_bf16 {vr(O[psub],16)}, {vr(V[pt%2]+4,4)}, {vr(prv+8,8)}, v{vIDX}")
                e(2); e(3)
                if kind==0:
                    nd = 2 if (NSTEP-st['next']) > (8*NQ-u) else 1
                    for _ in range(nd):
                        if st['next']<NSTEP:
                            dma(st['next']); st['next']+=1
                e(4); e(5)
                if sub==0: a("s_waitcnt lgkmcnt(0)")
                krb=Kr[(nt>>1)%2]+2*(nt&1)
                a(f"v_mfma_f32_32x32x8_bf16 {vr(nxt,16)}, {vr(krb,2)}, {vr(Qr[nsub],2)}, 0")
                e(6); e(7); e(8); e(9)
                a(f"v_mfma_f32_32x32x16_bf16 {vr(nxt,16)}, {vr(Km[nt%2],4)}, {vr(Qm[nsub],4)}, {vr(nxt,16)}")
                e(10); e(11); e(12); e(13)
                if sub==0:
                    kt=t+KD
                    if kind==0 and t==(3 if early else 8-KD):
                        assert st['next']>=steps_needed(2)
                        a(f"s_waitcnt vmcnt({st['next']-steps_needed(2)})")
                        a("s_barrier")
                        if prof: a("s_memtime s[56:57]")
                    if kt==8:
                        if kind==1:
                            a("s_waitcnt vmcnt(0)")
                            a("s_barrier")
                            if prof: a("s_memtime s[58:59]")
                            a(f"s_cmp_ge_u32 s{sF}, 1600")
                            a("s_cbranch_scc1 Lattn_nowt")
                            a(f"s_lshl_b32 s16, s{sF}, 10")
                            a(f"s_add_u32 s16, s16, {WS_WT}")
                            for ee in range(4): a(f"v_lshl_or_b32 v{WT+ee}, v{WT+2*ee+1}, 16, v{WT+2*ee}")
                            a(f"buffer_store_dwordx4 {vr(WT,4)}, v{vL16}, s[8:11], s16 offen")
                            a.label("Lattn_nowt")
                        a(f"v_add_u32 v{vKr}, {CHUNK}, v{vKr}")
                    vt=t+1
                    voff = vt*1280 if vt<8 else CHUNK+(vt-8)*1280
                    koff = kt*1024 if kt<8 else CHUNK+(kt-8)*1024
                    SM0=f"v_smfmac_f32_32x32x32_bf16 {vr(O[sub],16)}, {vr(V[t%2],4)}, {vr(cur,8)}, v{vIDX}"
                    if 'smmid' not in var and 'smlast' not in var: a(SM0)
                    if 'kfirst' in var: a(f"ds_read_b128 {vr(Km[kt%2],4)}, v{vKm} offset:{koff}")
                    a(f"s_mov_b64 exec, s[{MV}:{MV+1}]")
                    a(f"ds_read_b128 {vr(V[vt%2],4)}, v{vV} offset:{voff}")
                    if 'smmid' in var: a(SM0)
                    a(f"ds_read_b128 {vr(V[vt%2]+4,4)}, v{vV} offset:{voff+640}")
                    if kt%2==0:
                        a(f"s_mov_b64 exec, s[{MLO}:{MLO+1}]")
                        j=kt%8
                        a(f"ds_read2_b64 {vr(Kr[(kt>>1)%2],4)}, v{vKr} offset0:{32*j} offset1:{32*j+32}")
                    a("s_mov_b64 exec, -1")
                    if 'kfirst' not in var: a(f"ds_read_b128 {vr(Km[kt%2],4)}, v{vKm} offset:{koff}")
                    if 'smlast' in var: a(SM0)
                else:
                    a(f"v_smfmac_f32_32x32x32_bf16 {vr(O[sub],16)}, {vr(V[t%2],4)}, {vr(cur,8)}, v{vIDX}")
                e(14); e(15)
        a(f"v_add_u32 v{vKm}, {CHUNK}, v{vKm}")
        a(f"v_add_u32 v{vV}, {CHUNK}, v{vV}")
    a(f"s_cmp_lg_u32 s{sRETRY}, 0")
    a("s_cbranch_scc1 Lattn_loop")
    a.label("Lattn_peel")
    chunk(0)
    assert st['next']==NSTEP
    for ee in range(8):
        a(f"buffer_load_ushort v{WT+ee}, v{vWA if ee<4 else vWB}, s[36:39], s34 offen offset:{(ee&3)*1280}")
    chunk(1)
    a(f"s_mov_b32 s{sCH}, 2")
    a(".p2align 6")
    if 'pad4' in var: a("s_nop 0")
    a.label("Lattn_loop")
    chunk(2)
    a(f"s_add_u32 s{sCH}, s{sCH}, 1")
    if prio:
        a(f"s_cmp_lt_u32 s{sCH}, 5")
        a("s_cbranch_scc1 Lattn_loop")
        a("s_setprio 2")
        a(f"s_cmp_eq_u32 s{sCH}, 5")
        a("s_cbranch_scc1 Lattn_loop")
        a("s_setprio 1")
        a(f"s_cmp_eq_u32 s{sCH}, 6")
        a("s_cbranch_scc1 Lattn_loop")
        a("s_setprio 0")
        if pf:
            a(f"s_cmp_lg_u32 s{sCH}, 7")
            a("s_cbranch_scc1 Lattn_nopf")
            a("s_lshr_b32 s16, s2, 3")
            a(f"s_mul_i32 s16, s16, {NW}")
            a(f"s_add_u32 s16, s16, s{sW}")
            a("s_lshl_b32 s16, s16, 10")
            a("s_and_b32 s17, s2, 1")
            a("s_mul_i32 s17, s17, 819200")
            a("s_add_u32 s16, s16, s17")
            a(f"s_add_u32 s16, s16, {WS_WT}")
            for k in range(-(-800//(32*NW))):
                a(f"buffer_load_dword v{WT+4+k}, v{vL16}, s[8:11], s16 offen")
                a(f"s_add_u32 s16, s16, {32*NW*1024}")
            a.label("Lattn_nopf")
    a(f"s_cmp_lt_u32 s{sCH}, 8")
    a("s_cbranch_scc1 Lattn_loop")
    a.label("Lattn_loopend")
    lastu=8*NQ-1
    a(f"v_smfmac_f32_32x32x32_bf16 {vr(O[NQ-1],16)}, {vr(V[7%2]+4,4)}, {vr(S[lastu%NSB]+8,8)}, v{vIDX}")
    a("s_waitcnt lgkmcnt(0)")
    if prof:
        a("s_memtime s[46:47]"); a("s_waitcnt lgkmcnt(0)")
    a(f"s_lshr_b32 s16, s{sHQ}, 1")
    a("s_mul_i32 s16, s16, 2560")
    a(f"s_mul_i32 s17, s{sQT}, 81920")
    a("s_add_u32 s16, s16, s17")
    a(f"s_add_u32 s16, s16, {WS_O}")
    a(f"s_and_b32 s17, s{sHQ}, 1")
    a("s_lshl_b32 s23, s17, 10")
    a("s_add_u32 s23, s23, s16")
    a("s_lshl_b32 s17, s17, 3")
    a("s_add_u32 s16, s16, s17")
    a("s_add_u32 s16, s16, 2048")
    a(f"v_mov_b32 v{vT}, 0x5d800000")
    a("s_mov_b64 s[30:31], -1")
    a("s_nop 3")
    for i in range(NQ):
        a(f"s_mov_b64 exec, s[{MHI}:{MHI+1}]")
        a(f"v_mov_b32 v{O[i]+12}, v{O[i]+8}")
        a("s_mov_b64 exec, -1")
        a(f"v_cmp_lt_f32 vcc, v{O[i]+12}, v{vT}")
        a("s_nop 1")
        a("s_and_b64 s[30:31], s[30:31], vcc")
    a("s_cmp_eq_u64 s[30:31], -1")
    a("s_cbranch_scc0 Lattn_fallback")
    a.label("Lattn_ok")
    for i in range(NQ):
        a(f"v_rcp_f32 v{vT}, v{O[i]+12}")
        a("s_nop 0")
        a(f"v_mul_f32 v{vT}, v{vT}, v{vG[i]}")
        for r in range(12): a(f"v_mul_f32 v{O[i]+r}, v{O[i]+r}, v{vT}")
        for r in range(6): a(f"v_cvt_pk_bf16_f32 v{S[i]+r}, v{O[i]+2*r}, v{O[i]+2*r+1}")
        a(f"buffer_store_dwordx4 {vr(S[i],4)}, v{vL16}, s[8:11], s23 offen")
        a(f"s_mov_b64 exec, s[{MLO}:{MLO+1}]")
        a(f"buffer_store_dwordx2 {vr(S[i]+4,2)}, v{vL16}, s[8:11], s16 offen")
        a("s_mov_b64 exec, -1")
        if i<NQ-1:
            a("s_add_u32 s23, s23, 81920")
            a("s_add_u32 s16, s16, 81920")
    if prof: prof_end(a,40,50,52,8,sW,NW,0,mids=(42,44,56,58,46))
    a.label("Lattn_end")
    a("s_endpgm")
    a.label("Lattn_fallback")
    a(f"s_cmp_lg_u32 s{sRETRY}, 0")
    a("s_cbranch_scc1 Lattn_ok")
    a(f"s_mov_b32 s{sRETRY}, 1")
    a(f"s_mov_b64 exec, s[{MHI}:{MHI+1}]")
    for i in range(NQ):
        a(f"v_mov_b32 v{Qr[i]}, 0"); a(f"v_mov_b32 v{Qr[i]+1}, 0")
    a("s_mov_b64 exec, -1")
    for i in range(NQ): a(f"v_mov_b32 v{vM[i]}, 0xff800000")
    a(f"s_mov_b32 s{sT}, 0")
    a.label("Lattn_mloop")
    a(f"s_lshr_b32 s23, s{sT}, 3")
    a(f"s_mul_i32 s23, s23, {CHUNK}")
    a(f"s_and_b32 s{sT2}, s{sT}, 7")
    a(f"s_lshl_b32 s30, s{sT2}, 10")
    a("s_add_u32 s30, s30, s23")
    a(f"s_lshl_b32 s31, s{sT2}, 8")
    a("s_add_u32 s31, s31, s23")
    a(f"v_add_u32 v{vT}, s30, v{vL16}")
    a(f"v_add_u32 v{vT2}, s31, v{vR8}")
    a(f"ds_read_b128 {vr(Km[0],4)}, v{vT}")
    a(f"s_mov_b64 exec, s[{MLO}:{MLO+1}]")
    a(f"ds_read_b64 {vr(Kr[0],2)}, v{vT2} offset:8192")
    a("s_mov_b64 exec, -1")
    a("s_waitcnt lgkmcnt(0)")
    for i in range(NQ):
        a(f"v_mfma_f32_32x32x8_bf16 {vr(S[i],16)}, {vr(Kr[0],2)}, {vr(Qr[i],2)}, 0")
        a(f"v_mfma_f32_32x32x16_bf16 {vr(S[i],16)}, {vr(Km[0],4)}, {vr(Qm[i],4)}, {vr(S[i],16)}")
    a("s_nop 15")
    for i in range(NQ):
        for r in range(0,16,2):
            a(f"v_max3_f32 v{vM[i]}, v{S[i]+r}, v{S[i]+r+1}, v{vM[i]}")
    a(f"s_add_u32 s{sT}, s{sT}, 1")
    a(f"s_cmp_lt_u32 s{sT}, 64")
    a("s_cbranch_scc1 Lattn_mloop")
    a("s_branch Lattn_zero")
    txt=a.text()
    if var.startswith('no'):
        head,rest=txt.split("Lattn_peel:",1)
        body,tail=rest.split("Lattn_loopend:",1)
        L=body.split("\n")
        if 'nosm' in var: L=[x for x in L if 'v_smfmac' not in x]
        if 'noqk' in var: L=[x for x in L if 'v_mfma' not in x]
        if 'noexp' in var: L=[x for x in L if 'v_exp' not in x]
        if 'nods' in var: L=[x for x in L if 'ds_read' not in x]
        if 'noexec' in var: L=[x for x in L if 'exec' not in x]
        if 'nowait' in var: L=[x for x in L if 'lgkmcnt' not in x]
        txt=head+"Lattn_peel:"+"\n".join(L)+"Lattn_loopend:"+tail
        txt=txt.replace("s_cbranch_scc0 Lattn_fallback","s_nop 0",1)
    return txt, NV, 64*NW
```

```python
from gen_common import *

def gen_attn(NQ=1, prof=False, var='', prio=1, zrows=1, pf=0, early=1):
    NW=16
    NSTEP=160//NW
    a=A()
    NSB = 2
    DQ = NSB//2
    S=[16+16*i for i in range(NSB)]
    p=16+16*NSB
    O=[p+16*i for i in range(NQ)]
    p+=16*NQ
    Qm=[p+4*i for i in range(NQ)]; p+=4*NQ
    Km=[p,p+4]; p+=8
    Kr=[p,p+4]; p+=8
    V=[p,p+8]; p+=16
    Qr=[p+2*i for i in range(NQ)]; p+=2*NQ
    WT=16; vWA=14; vWB=15
    NV=p
    vIDX=1; vKm=2; vKr=3; vV=4; vL16=5; vG=[6,7]; vT=8; vT2=9; vM=[10,11]; vLane=12; vR8=13
    sHQ=12; sQB=13; sKV=14; sW=15; sT=16; sT2=17; sCH=18; sSYNC=19; sRETRY=20; sQT=22
    MV=24; MLO=26; MHI=28; sM0=32; sSRC=33
    def steps_needed(nchunks): return -(-(20*nchunks)//NW)
    a("s_cmp_ge_u32 s2, 256")
    a("s_cbranch_scc1 Lattn_end")
    a("s_load_dwordx2 s[4:5], s[0:1], 88")
    a("s_load_dwordx2 s[6:7], s[0:1], 32")
    a("s_load_dwordx2 s[38:39], s[0:1], 56")
    if prof:
        a("s_memtime s[40:41]"); a("s_memrealtime s[50:51]")
    a(f"v_and_b32 v{vLane}, 63, v0")
    a(f"v_lshrrev_b32 v{vT}, 6, v0")
    a(f"v_lshlrev_b32 v{vL16}, 4, v{vLane}")
    a(f"v_readfirstlane_b32 s{sW}, v{vT}")
    a("s_and_b32 s16, s2, 7")
    a("s_lshr_b32 s17, s2, 3")
    a(f"s_and_b32 s{sQB}, s17, 3")
    a("s_lshr_b32 s17, s17, 2")
    a("s_lshl_b32 s16, s16, 2")
    a("s_and_b32 s23, s17, 3")
    a("s_add_u32 s16, s16, s23")
    a("s_lshr_b32 s17, s17, 2")
    a("s_lshl_b32 s23, s17, 5")
    a(f"s_add_u32 s{sHQ}, s16, s23")
    a("s_cmp_eq_u32 s17, 0")
    a(f"s_cselect_b32 s{sKV}, 32, s16")
    a(f"s_mul_i32 s{sKV}, s{sKV}, {KV_BYTES}")
    a(f"s_add_u32 s{sKV}, s{sKV}, {WS_KV}")
    a(f"s_lshl_b32 s{sM0}, s{sW}, 10")
    a(f"s_add_u32 s{sSRC}, s{sM0}, s{sKV}")
    a(f"s_lshl_b32 s{sQT}, s{sQB}, 4")
    a(f"s_and_b32 s16, s{sW}, 7"); a(f"s_mul_i32 s16, s16, {NQ}")
    a(f"s_add_u32 s{sQT}, s{sQT}, s16")
    a(f"v_and_b32 v{vT}, 31, v{vLane}")
    a(f"v_lshlrev_b32 v{vR8}, 3, v{vT}")
    a(f"v_lshlrev_b32 v{vT2}, 2, v{vT}")
    a(f"s_mov_b32 s10, {WS_END}")
    a("s_mov_b32 s11, 0x00020000")
    a(f"s_mul_i32 s16, s{sHQ}, {QH_BYTES}")
    a(f"s_lshl_b32 s23, s{sQT}, 10")
    a("s_add_u32 s23, s23, s16")
    a(f"s_lshl_b32 s30, s{sQT}, 8")
    a("s_add_u32 s30, s30, s16")
    a("s_add_u32 s30, s30, 65536")
    a("s_lshl_b32 s31, s17, 13")
    a(f"s_lshl_b32 s16, s{sQT}, 7")
    a("s_add_u32 s31, s31, s16")
    a(f"s_add_u32 s31, s31, {WS_G}")
    a(f"s_mov_b32 m0, s{sM0}")
    a("s_waitcnt lgkmcnt(0)")
    a("s_mov_b32 s8, s4")
    a("s_mov_b32 s9, s5")
    def dma(s):
        a(f"buffer_load_dwordx4 v{vL16}, s[8:11], s{sSRC} offen lds")
        if s<NSTEP-1:
            a(f"s_add_u32 s{sM0}, s{sM0}, {NW*1024}")
            a(f"s_add_u32 s{sSRC}, s{sSRC}, {NW*1024}")
            a(f"s_mov_b32 m0, s{sM0}")
            a("s_nop 0")
    N1=steps_needed(1) if not early else 16//NW
    dma(0)
    for i in range(NQ):
        a(f"buffer_load_dwordx4 {vr(Qm[i],4)}, v{vL16}, s[8:11], s23 offen offset:{1024*i}")
    for i in range(NQ):
        a(f"buffer_load_dwordx2 {vr(Qr[i],2)}, v{vR8}, s[8:11], s30 offen offset:{256*i}")
    for s in range(1,N1): dma(s)
    for i in range(NQ):
        a(f"buffer_load_dword v{vG[i]}, v{vT2}, s[8:11], s31 offen offset:{128*i}")
    sF=21
    a('s_mov_b32 s21, 5000')
    a(f"s_mov_b32 s{MV}, 0x000fffff")
    a(f"s_mov_b32 s{MV+1}, 0x000fffff")
    a(f"s_mov_b32 s{MLO}, -1")
    a(f"s_mov_b32 s{MLO+1}, 0")
    a(f"s_mov_b32 s{MHI}, 0")
    a(f"s_mov_b32 s{MHI+1}, -1")
    a(f"v_mov_b32 v{vIDX}, 0xdddddddd")
    if zrows:
        a(f"v_mov_b32 v{vT2}, 0")
        a("s_mov_b32 s16, 0x01100000")
        a("s_mov_b32 s17, 0x01100000")
        a("s_mov_b64 exec, s[16:17]")
        a(f"v_mov_b32 v{vT2}, 0x3f803f80")
        a("s_mov_b64 exec, -1")
    else:
        a(f"v_mov_b32 v{vT2}, 0x3f803f80")
    for b in range(2):
        for i in range(8): a(f"v_mov_b32 v{V[b]+i}, v{vT2}")
        a(f"v_mov_b32 v{Kr[b]}, 0x3f803f80"); a(f"v_mov_b32 v{Kr[b]+1}, 0x3f80")
        a(f"v_mov_b32 v{Kr[b]+2}, 0x3f803f80"); a(f"v_mov_b32 v{Kr[b]+3}, 0x3f80")
    a(f"s_mov_b32 s{sSYNC}, 2")
    a(f"s_mov_b32 s{sRETRY}, 0")
    a(f"v_lshrrev_b32 v{vT}, 5, v{vLane}")
    a(f"v_mul_u32_u24 v{vT}, 320, v{vT}")
    a(f"v_lshlrev_b32 v{vT2}, 1, v{vR8}")
    a(f"v_add_u32 v14, v{vT}, v{vT2}")
    a(f"v_add_u32 v14, 10240, v14")
    a.label("Lattn_zero")
    for i in range(NQ):
        for r in range(16): a(f"v_mov_b32 v{O[i]+r}, 0")
    for r in range(8,16): a(f"v_mov_b32 v{S[NSB-1]+r}, 0")
    a(f"s_cmp_lg_u32 s{sRETRY}, 0")
    a("s_cbranch_scc1 Lattn_start")
    a(f"s_waitcnt vmcnt({NQ})")
    a(f"s_mov_b64 exec, s[{MHI}:{MHI+1}]")
    for i in range(NQ):
        a(f"v_mov_b32 v{Qr[i]}, 0"); a(f"v_mov_b32 v{Qr[i]+1}, 0")
    a("s_mov_b64 exec, -1")
    a("s_barrier")
    if prof: a("s_memtime s[42:43]")
    a.label("Lattn_start")
    a(f"v_mov_b32 v{vKm}, v{vL16}")
    a(f"v_add_u32 v{vKr}, 8192, v{vR8}")
    a(f"v_mov_b32 v{vV}, v14")
    a(f"ds_read_b128 {vr(Km[0],4)}, v{vKm}")
    a(f"ds_read_b128 {vr(Km[1],4)}, v{vKm} offset:1024")
    a(f"s_mov_b64 exec, s[{MLO}:{MLO+1}]")
    a(f"ds_read2_b64 {vr(Kr[0],4)}, v{vKr} offset0:0 offset1:32")
    a(f"s_mov_b64 exec, s[{MV}:{MV+1}]")
    a(f"ds_read_b128 {vr(V[0],4)}, v{vV}")
    a(f"ds_read_b128 {vr(V[0]+4,4)}, v{vV} offset:640")
    a("s_mov_b64 exec, -1")
    a("s_waitcnt lgkmcnt(2)")
    for i in range(NQ):
        a(f"v_mfma_f32_32x32x8_bf16 {vr(S[i],16)}, {vr(Kr[0],2)}, {vr(Qr[i],2)}, 0")
        a(f"v_mfma_f32_32x32x16_bf16 {vr(S[i],16)}, {vr(Km[0],4)}, {vr(Qm[i],4)}, {vr(S[i],16)}")
    a(f"s_mov_b32 s{sCH}, 0")
    a(f"s_cmp_lg_u32 s{sRETRY}, 0")
    a("s_nop 9" if NQ==1 else "s_nop 7")
    a("s_cbranch_scc1 Lattn_havemax")
    for i in range(NQ):
        for r in range(0,16,2):
            if r==0: a(f"v_max_f32 v{vM[i]}, v{S[i]+r}, v{S[i]+r+1}")
            else: a(f"v_max3_f32 v{vM[i]}, v{S[i]+r}, v{S[i]+r+1}, v{vM[i]}")
    a.label("Lattn_havemax")
    for i in range(NQ):
        a(f"v_mov_b32 v{vT}, v{vM[i]}")
        a("s_nop 1")
        a(f"v_permlane32_swap_b32 v{vM[i]}, v{vT}")
        a("s_nop 1")
        a(f"v_max_f32 v{vM[i]}, v{vM[i]}, v{vT}")
        a(f"v_xor_b32 v{vM[i]}, 0x80000000, v{vM[i]}")
    a(f"s_mov_b64 exec, s[{MHI}:{MHI+1}]")
    for i in range(NQ):
        a(f"v_and_b32 v{vT}, 0xffff0000, v{vM[i]}")
        a(f"v_sub_f32 v{vT2}, v{vM[i]}, v{vT}")
        a(f"v_and_b32 v{Qr[i]}, 0xffff0000, v{vT2}")
        a(f"v_sub_f32 v{vT2}, v{vT2}, v{Qr[i]}")
        a(f"v_lshrrev_b32 v{Qr[i]+1}, 16, v{vT2}")
        a(f"v_lshrrev_b32 v{vT}, 16, v{vT}")
        a(f"v_or_b32 v{Qr[i]}, v{Qr[i]}, v{vT}")
    a("s_mov_b64 exec, -1")
    for i in range(NQ):
        for r in range(16): a(f"v_add_f32 v{S[i]+r}, v{S[i]+r}, v{vM[i]}")
    if prof:
        a("s_memtime s[44:45]"); a("s_waitcnt lgkmcnt(0)")
    if prio: a("s_setprio 3")
    KD = 1
    st={'next':N1}
    def chunk(kind):
        for t in range(8):
            for sub in range(NQ):
                u=t*NQ+sub
                cur=S[u%NSB]; nxt=S[(u+DQ)%NSB]; prv=S[(u-1)%NSB]
                pt,psub=divmod(u-1+8*NQ,NQ)
                nt,nsub=divmod(u+DQ,NQ)
                def e(i): a(f"v_exp_f32 v{cur+i}, v{cur+i}")
                a.c(f"--- tile {t} sub {sub}")
                e(0); e(1)
                a(f"v_smfmac_f32_32x32x32_bf16 {vr(O[psub],16)}, {vr(V[pt%2]+4,4)}, {vr(prv+8,8)}, v{vIDX}")
                e(2); e(3)
                if kind==0:
                    nd = 1
                    for _ in range(nd):
                        if st['next']<NSTEP:
                            dma(st['next']); st['next']+=1
                e(4); e(5)
                if sub==NQ-1: a("s_waitcnt lgkmcnt(0)")
                krb=Kr[(nt>>1)%2]+2*(nt&1)
                a(f"v_mfma_f32_32x32x8_bf16 {vr(nxt,16)}, {vr(krb,2)}, {vr(Qr[nsub],2)}, 0")
                e(6); e(7); e(8); e(9)
                a(f"v_mfma_f32_32x32x16_bf16 {vr(nxt,16)}, {vr(Km[nt%2],4)}, {vr(Qm[nsub],4)}, {vr(nxt,16)}")
                e(10); e(11); e(12); e(13)
                if sub==0:
                    kt=t+KD
                    if kind==0 and t==(3 if early else 8-KD):
                        assert st['next']>=steps_needed(2)
                        a(f"s_waitcnt vmcnt({st['next']-steps_needed(2)})")
                        a("s_barrier")
                        if prof: a("s_memtime s[56:57]")
                    if kt==8:
                        if kind==1:
                            a("s_waitcnt vmcnt(0)")
                            a("s_barrier")
                            if prof: a("s_memtime s[58:59]")
                            a(f"s_cmp_ge_u32 s{sF}, 1600")
                            a("s_cbranch_scc1 Lattn_nowt")
                            a(f"s_lshl_b32 s16, s{sF}, 10")
                            a(f"s_add_u32 s16, s16, {WS_WT}")
                            for ee in range(4): a(f"v_lshl_or_b32 v{WT+ee}, v{WT+2*ee+1}, 16, v{WT+2*ee}")
                            a(f"buffer_store_dwordx4 {vr(WT,4)}, v{vL16}, s[8:11], s16 offen")
                            a.label("Lattn_nowt")
                        a(f"v_add_u32 v{vKr}, {CHUNK}, v{vKr}")
                    vt=t+1
                    voff = vt*1280 if vt<8 else CHUNK+(vt-8)*1280
                    koff = kt*1024 if kt<8 else CHUNK+(kt-8)*1024
                    SM0=f"v_smfmac_f32_32x32x32_bf16 {vr(O[sub],16)}, {vr(V[t%2],4)}, {vr(cur,8)}, v{vIDX}"
                    if 'smmid' not in var and 'smlast' not in var: a(SM0)
                    if 'kfirst' in var: a(f"ds_read_b128 {vr(Km[kt%2],4)}, v{vKm} offset:{koff}")
                    a(f"s_mov_b64 exec, s[{MV}:{MV+1}]")
                    a(f"ds_read_b128 {vr(V[vt%2],4)}, v{vV} offset:{voff}")
                    if 'smmid' in var: a(SM0)
                    a(f"ds_read_b128 {vr(V[vt%2]+4,4)}, v{vV} offset:{voff+640}")
                    if kt%2==0:
                        a(f"s_mov_b64 exec, s[{MLO}:{MLO+1}]")
                        j=kt%8
                        a(f"ds_read2_b64 {vr(Kr[(kt>>1)%2],4)}, v{vKr} offset0:{32*j} offset1:{32*j+32}")
                    a("s_mov_b64 exec, -1")
                    if 'kfirst' not in var: a(f"ds_read_b128 {vr(Km[kt%2],4)}, v{vKm} offset:{koff}")
                    if 'smlast' in var: a(SM0)
                else:
                    a(f"v_smfmac_f32_32x32x32_bf16 {vr(O[sub],16)}, {vr(V[t%2],4)}, {vr(cur,8)}, v{vIDX}")
                    if 'nop' in var: a("s_nop 4")
                e(14); e(15)
        a(f"v_add_u32 v{vKm}, {CHUNK}, v{vKm}")
        a(f"v_add_u32 v{vV}, {CHUNK}, v{vV}")
    a(f"s_cmp_lg_u32 s{sRETRY}, 0")
    a("s_cbranch_scc1 Lattn_loop")
    a.label("Lattn_peel")
    chunk(0)
    assert st['next']==NSTEP
    chunk(1)
    a(f"s_mov_b32 s{sCH}, 6"); a("s_setprio 1")
    a(".p2align 6")
    if 'pad4' in var: a("s_nop 0")
    a.label("Lattn_loop")
    chunk(2)
    a(f"s_add_u32 s{sCH}, s{sCH}, 1")
    if prio:
        a(f"s_cmp_lt_u32 s{sCH}, 5")
        a("s_cbranch_scc1 Lattn_loop")
        a("s_setprio 2")
        a(f"s_cmp_eq_u32 s{sCH}, 5")
        a("s_cbranch_scc1 Lattn_loop")
        a("s_setprio 1")
        a(f"s_cmp_eq_u32 s{sCH}, 6")
        a("s_cbranch_scc1 Lattn_loop")
        a("s_setprio 0")
        if pf:
            a(f"s_cmp_lg_u32 s{sCH}, 7")
            a("s_cbranch_scc1 Lattn_nopf")
            a("s_lshr_b32 s16, s2, 3")
            a(f"s_mul_i32 s16, s16, {NW}")
            a(f"s_add_u32 s16, s16, s{sW}")
            a("s_lshl_b32 s16, s16, 10")
            a("s_and_b32 s17, s2, 1")
            a("s_mul_i32 s17, s17, 819200")
            a("s_add_u32 s16, s16, s17")
            a(f"s_add_u32 s16, s16, {WS_WT}")
            for k in range(-(-800//(32*NW))):
                a(f"buffer_load_dword v{WT+4+k}, v{vL16}, s[8:11], s16 offen")
                a(f"s_add_u32 s16, s16, {32*NW*1024}")
            a.label("Lattn_nopf")
    a(f"s_cmp_lt_u32 s{sCH}, 8")
    a("s_cbranch_scc1 Lattn_loop")
    a.label("Lattn_loopend")
    lastu=8*NQ-1
    a(f"v_smfmac_f32_32x32x32_bf16 {vr(O[NQ-1],16)}, {vr(V[7%2]+4,4)}, {vr(S[lastu%NSB]+8,8)}, v{vIDX}")
    a("s_waitcnt lgkmcnt(0)")
    if prof:
        a("s_memtime s[46:47]"); a("s_waitcnt lgkmcnt(0)")
    a(f"s_lshr_b32 s16, s{sHQ}, 1")
    a("s_mul_i32 s16, s16, 2560")
    a(f"s_mul_i32 s17, s{sQT}, 81920")
    a("s_add_u32 s16, s16, s17")
    a(f"s_add_u32 s16, s16, {WS_O}")
    a(f"s_and_b32 s17, s{sHQ}, 1")
    a("s_lshl_b32 s23, s17, 10")
    a("s_add_u32 s23, s23, s16")
    a("s_lshl_b32 s17, s17, 3")
    a("s_add_u32 s16, s16, s17")
    a("s_add_u32 s16, s16, 2048")
    a(f"v_mov_b32 v{vT}, 0x5d800000")
    a("s_mov_b64 s[30:31], -1")
    a("s_nop 3")
    for i in range(NQ):
        a(f"s_mov_b64 exec, s[{MHI}:{MHI+1}]")
        a(f"v_mov_b32 v{O[i]+12}, v{O[i]+8}")
        a("s_mov_b64 exec, -1")
        a(f"v_cmp_lt_f32 vcc, v{O[i]+12}, v{vT}")
        a("s_nop 1")
        a("s_and_b64 s[30:31], s[30:31], vcc")
    a("s_cmp_eq_u64 s[30:31], -1")
    a("s_nop 0")
    a.label("Lattn_ok")
    for i in range(NQ):
        a(f"v_rcp_f32 v{vT}, v{O[i]+12}")
        a("s_nop 0")
        a(f"v_mul_f32 v{vT}, v{vT}, v{vG[i]}")
        for r in range(12): a(f"v_mul_f32 v{O[i]+r}, v{O[i]+r}, v{vT}")
        for r in range(6): a(f"v_cvt_pk_bf16_f32 v{S[i]+r}, v{O[i]+2*r}, v{O[i]+2*r+1}")
        a(f"buffer_store_dwordx4 {vr(S[i],4)}, v{vL16}, s[8:11], s23 offen")
        a(f"s_mov_b64 exec, s[{MLO}:{MLO+1}]")
        a(f"buffer_store_dwordx2 {vr(S[i]+4,2)}, v{vL16}, s[8:11], s16 offen")
        a("s_mov_b64 exec, -1")
        if i<NQ-1:
            a("s_add_u32 s23, s23, 81920")
            a("s_add_u32 s16, s16, 81920")
    if prof: prof_end(a,40,50,52,8,sW,NW,0,mids=(42,44,56,58,46))
    a.label("Lattn_end")
    a("s_endpgm")
    a.label("Lattn_fallback")
    a(f"s_cmp_lg_u32 s{sRETRY}, 0")
    a("s_cbranch_scc1 Lattn_ok")
    a(f"s_mov_b32 s{sRETRY}, 1")
    a(f"s_mov_b64 exec, s[{MHI}:{MHI+1}]")
    for i in range(NQ):
        a(f"v_mov_b32 v{Qr[i]}, 0"); a(f"v_mov_b32 v{Qr[i]+1}, 0")
    a("s_mov_b64 exec, -1")
    for i in range(NQ): a(f"v_mov_b32 v{vM[i]}, 0xff800000")
    a(f"s_mov_b32 s{sT}, 0")
    a.label("Lattn_mloop")
    a(f"s_lshr_b32 s23, s{sT}, 3")
    a(f"s_mul_i32 s23, s23, {CHUNK}")
    a(f"s_and_b32 s{sT2}, s{sT}, 7")
    a(f"s_lshl_b32 s30, s{sT2}, 10")
    a("s_add_u32 s30, s30, s23")
    a(f"s_lshl_b32 s31, s{sT2}, 8")
    a("s_add_u32 s31, s31, s23")
    a(f"v_add_u32 v{vT}, s30, v{vL16}")
    a(f"v_add_u32 v{vT2}, s31, v{vR8}")
    a(f"ds_read_b128 {vr(Km[0],4)}, v{vT}")
    a(f"s_mov_b64 exec, s[{MLO}:{MLO+1}]")
    a(f"ds_read_b64 {vr(Kr[0],2)}, v{vT2} offset:8192")
    a("s_mov_b64 exec, -1")
    a("s_waitcnt lgkmcnt(0)")
    for i in range(NQ):
        a(f"v_mfma_f32_32x32x8_bf16 {vr(S[i],16)}, {vr(Kr[0],2)}, {vr(Qr[i],2)}, 0")
        a(f"v_mfma_f32_32x32x16_bf16 {vr(S[i],16)}, {vr(Km[0],4)}, {vr(Qm[i],4)}, {vr(S[i],16)}")
    a("s_nop 15")
    for i in range(NQ):
        for r in range(0,16,2):
            a(f"v_max3_f32 v{vM[i]}, v{S[i]+r}, v{S[i]+r+1}, v{vM[i]}")
    a(f"s_add_u32 s{sT}, s{sT}, 1")
    a(f"s_cmp_lt_u32 s{sT}, 64")
    a("s_cbranch_scc1 Lattn_mloop")
    a("s_branch Lattn_zero")
    txt=a.text()
    if var.startswith('no'):
        head,rest=txt.split("Lattn_peel:",1)
        body,tail=rest.split("Lattn_loopend:",1)
        L=body.split("\n")
        if 'nosm' in var: L=[x for x in L if 'v_smfmac' not in x]
        if 'noqk' in var: L=[x for x in L if 'v_mfma' not in x]
        if 'noexp' in var: L=[x for x in L if 'v_exp' not in x]
        if 'nods' in var: L=[x for x in L if 'ds_read' not in x]
        if 'noexec' in var: L=[x for x in L if 'exec' not in x]
        if 'nowait' in var: L=[x for x in L if 'lgkmcnt' not in x]
        txt=head+"Lattn_peel:"+"\n".join(L)+"Lattn_loopend:"+tail
        txt=txt.replace("s_cbranch_scc0 Lattn_fallback","s_nop 0",1)
    return txt, NV, 64*NW
```

```python
from gen_common import *
import struct
CQ=(20**-0.5)*1.4426950408889634
def fbits(x): return struct.unpack("<I",struct.pack("<f",x))[0]

def gen_proj(prof=False, rot=1, var=''):
    a=A()
    STG=40960; XO=0; WO=16384; EO=36864
    SX=8; SW=12; SE=16; SWS=20
    sMB=24; sNB=25; sWv=26; sLD=27; sKX=28; sKW=29; sKE=30; sStepW=31; sStepE=32; sBufD=33; sBufR=34; sIt=35
    sTT=36; sHS=37; sOm=38; sOr=39; sScale=40; sM0a=41
    sT=46; sT2=47; sT3=48
    vLane=1; vD=2
    vXb=7; vXa=8
    vWb=12
    vWa=15
    vT=18; vT2=19; vT3=20; vN=21; vH=22; vOm=23; vOr=24; vT4=25; vT5=26
    ACC=[32,48,64]
    FX=[80,84,88,92]
    FW=[[96+12*f+4*i for i in range(3)] for f in range(4)]
    NV=144
    a("s_cmp_ge_u32 s2, 256")
    a("s_cbranch_scc1 Lproj_end")
    a("s_load_dwordx4 s[52:55], s[0:1], 0")
    a("s_load_dwordx4 s[56:59], s[0:1], 16")
    a("s_load_dwordx2 s[60:61], s[0:1], 48")
    a("s_load_dwordx2 s[62:63], s[0:1], 64")
    a("s_load_dwordx2 s[4:5], s[0:1], 88")
    if prof: prof_start(a,64,66)
    a(f"v_and_b32 v{vLane}, 63, v0")
    a(f"v_lshrrev_b32 v{vT}, 6, v0")
    a(f"v_and_b32 v{vN}, 31, v0")
    a(f"v_readfirstlane_b32 s{sWv}, v{vT}")
    a(f"v_lshrrev_b32 v{vH}, 5, v{vLane}")
    a(f"s_and_b32 s{sT}, s2, 7")
    a(f"s_lshr_b32 s{sT2}, s2, 3")
    if 'map84' in var:
        a(f"s_and_b32 s{sMB}, s{sT}, 1")
        a(f"s_lshl_b32 s{sMB}, s{sMB}, 3")
        a(f"s_and_b32 s{sT3}, s{sT2}, 7")
        a(f"s_add_u32 s{sMB}, s{sMB}, s{sT3}")
        a(f"s_lshr_b32 s{sNB}, s{sT}, 1")
        a(f"s_lshl_b32 s{sNB}, s{sNB}, 2")
        a(f"s_lshr_b32 s{sT2}, s{sT2}, 3")
        a(f"s_add_u32 s{sNB}, s{sNB}, s{sT2}")
    else:
        a(f"s_lshr_b32 s{sMB}, s{sT}, 1")
        a(f"s_lshl_b32 s{sMB}, s{sMB}, 2")
        a(f"s_and_b32 s{sT3}, s{sT2}, 3")
        a(f"s_add_u32 s{sMB}, s{sMB}, s{sT3}")
        a(f"s_and_b32 s{sNB}, s{sT}, 1")
        a(f"s_lshl_b32 s{sNB}, s{sNB}, 3")
        a(f"s_lshr_b32 s{sT2}, s{sT2}, 2")
        a(f"s_add_u32 s{sNB}, s{sNB}, s{sT2}")
    a(f"s_cmp_lt_u32 s{sNB}, 4")
    a(f"s_movk_i32 s{sLD}, 3840"); a(f"s_cselect_b32 s{sLD}, 1280, s{sLD}")
    a(f"s_cselect_b32 s{sT}, 0, 4")
    a(f"s_sub_u32 s{sT}, s{sNB}, s{sT}")
    a(f"s_mul_i32 s{sKW}, s{sT}, 320")
    a(f"s_lshl_b32 s{sStepW}, s{sLD}, 6")
    a(f"s_mul_i32 s{sKX}, s{sMB}, {128*1280}")
    a(f"s_mov_b32 s{sKE}, 0")
    a(f"s_lshl_b32 s{sT}, s{sWv}, 4")
    a(f"v_lshrrev_b32 v{vT}, 3, v{vLane}")
    a(f"v_add_u32 v{vT}, s{sT}, v{vT}")
    a(f"v_and_b32 v{vT2}, 7, v{vLane}")
    for e in range(2):
        if e: a(f"v_add_u32 v{vT}, 8, v{vT}")
        a(f"v_bfe_u32 v{vT3}, v{vT}, 1, 3")
        a(f"v_xor_b32 v{vT3}, v{vT3}, v{vT2}")
        a(f"v_lshlrev_b32 v{vT3}, 4, v{vT3}")
        a(f"v_mul_u32_u24 v{vD+e}, 1280, v{vT}")
        a(f"v_add_u32 v{vD+e}, v{vD+e}, v{vT3}")
    a(f"s_lshl_b32 s{sM0a}, s{sWv}, 11")
    a(f"s_add_u32 s{sM0a+1}, s{sM0a}, 1024")
    a(f"s_mul_i32 s{sT}, s{sWv}, 3")
    a(f"s_lshl_b32 s{sT2}, s{sWv}, 1")
    a(f"s_add_u32 s{sT2}, s{sT2}, 4")
    a(f"s_cmp_lt_u32 s{sWv}, 4")
    a(f"s_cselect_b32 s{sT}, s{sT}, s{sT2}")
    a(f"s_lshl_b32 s{sT2}, s{sT}, 6")
    a(f"v_add_u32 v{vT}, s{sT2}, v{vLane}")
    a(f"s_lshl_b32 s{sT}, s{sT}, 10")
    for e in range(3):
        if e: a(f"v_add_u32 v{vT}, 64, v{vT}")
        a(f"v_mul_u32_u24 v{vT2}, 3277, v{vT}")
        a(f"v_lshrrev_b32 v{vT2}, 16, v{vT2}")
        a(f"v_mul_u32_u24 v{vT3}, 20, v{vT2}")
        a(f"v_sub_u32 v{vT3}, v{vT}, v{vT3}")
        a(f"v_lshlrev_b32 v{vT3}, 4, v{vT3}")
        a(f"v_mul_lo_u32 v{vD+2+e}, v{vT2}, s{sLD}")
        a(f"v_add_u32 v{vD+2+e}, v{vD+2+e}, v{vT3}")
        a(f"s_add_u32 s{sM0a+2+e}, s{sT}, {WO+1024*e}")
    a(f"s_cmp_lt_u32 s{sWv}, 4")
    a("s_cbranch_scc1 Lproj_noE")
    a(f"s_sub_u32 s{sT}, s{sWv}, 4")
    a(f"s_lshl_b32 s{sT}, s{sT}, 10")
    a(f"v_lshlrev_b32 v{vD+4}, 4, v{vLane}")
    a(f"v_add_u32 v{vD+4}, s{sT}, v{vD+4}")
    a(f"s_add_u32 s{sM0a+4}, s{sT}, {EO}")
    a(f"s_cmp_eq_u32 s{sNB}, 2")
    a(f"s_movk_i32 s{sT}, 2560"); a(f"s_cselect_b32 s{sT}, 128, s{sT}")
    a(f"v_cmp_le_u32 vcc, s{sT}, v{vD+4}")
    a(f"v_mov_b32 v{vT}, 0x40000000")
    a("s_nop 0")
    a(f"v_cndmask_b32 v{vD+4}, v{vD+4}, v{vT}, vcc")
    a.label("Lproj_noE")
    a(f"s_cmp_eq_u32 s{sNB}, 2")
    a(f"s_movk_i32 s{sStepE}, 2560"); a(f"s_cselect_b32 s{sStepE}, 128, s{sStepE}")
    if prof: a("s_memtime s[76:77]")
    a("s_waitcnt lgkmcnt(0)")
    if prof: a("s_memtime s[78:79]")
    a(f"s_mov_b32 s{SX}, s52"); a(f"s_mov_b32 s{SX+1}, s53"); a(f"s_mov_b32 s{SX+2}, {2048*1280}"); a(f"s_mov_b32 s{SX+3}, 0x00020000")
    a(f"s_cmp_lt_u32 s{sNB}, 4")
    a(f"s_cselect_b32 s{SW}, s54, s60"); a(f"s_cselect_b32 s{SW+1}, s55, s61")
    a(f"s_mov_b32 s{SW+2}, {640*3840}"); a(f"s_cselect_b32 s{SW+2}, {640*1280}, s{SW+2}"); a(f"s_mov_b32 s{SW+3}, 0x00020000")
    a(f"s_cmp_eq_u32 s{sNB}, 1")
    a(f"s_cselect_b32 s{SE}, s58, s56"); a(f"s_cselect_b32 s{SE+1}, s59, s57")
    a(f"s_mov_b32 s{SE+2}, 25600")
    a(f"s_cmp_eq_u32 s{sNB}, 2")
    a(f"s_cselect_b32 s{SE}, s62, s{SE}"); a(f"s_cselect_b32 s{SE+1}, s63, s{SE+1}")
    a(f"s_cselect_b32 s{SE+2}, 1280, s{SE+2}")
    a(f"s_cmp_gt_u32 s{sNB}, 2")
    a(f"s_cselect_b32 s{SE+2}, 0, s{SE+2}")
    a(f"s_mov_b32 s{SE+3}, 0x00020000")
    a(f"s_mov_b32 s{SWS}, s4"); a(f"s_mov_b32 s{SWS+1}, s5"); a(f"s_mov_b32 s{SWS+2}, {WS_END}"); a(f"s_mov_b32 s{SWS+3}, 0x00020000")
    a(f"s_mov_b32 s{sBufD}, 0")
    sRX=6; sRW=7
    a(f"s_and_b32 s{sRX}, s{sNB}, 7")
    a(f"s_and_b32 s{sT}, s{sMB}, 3")
    a(f"s_mul_i32 s{sT}, s{sT}, 3")
    a(f"s_add_u32 s{sRX}, s{sRX}, s{sT}")
    a(f"s_cmp_ge_u32 s{sRX}, 10")
    a(f"s_cselect_b32 s{sT}, 10, 0")
    a(f"s_sub_u32 s{sRX}, s{sRX}, s{sT}")
    if not rot: a(f"s_mov_b32 s{sRX}, 0")
    a(f"s_mov_b32 s{sRW}, s{sRX}")
    a(f"s_lshl_b32 s{sT}, s{sRX}, 7")
    a(f"s_add_u32 s{sKX}, s{sKX}, s{sT}")
    a(f"s_mul_i32 s{sT}, s{sRX}, s{sStepW}")
    a(f"s_add_u32 s{sKW}, s{sKW}, s{sT}")
    a(f"s_mul_i32 s{sKE}, s{sRX}, s{sStepE}")
    a(f"s_mul_i32 s51, s{sStepW}, -9")
    a(f"s_mul_i32 s3, s{sStepE}, -9")
    def dma(g,e):
        a(f"s_add_u32 m0, s{sM0a+e}, s{sBufD}")
        if e<2: srd,so=SX,sKX
        elif e<4 or g==0: srd,so=SW,sKW
        else: srd,so=SE,sKE
        if e==1:
            a(f"s_add_u32 s{sRX}, s{sRX}, 1")
        elif e==4:
            a(f"s_add_u32 s{sRW}, s{sRW}, 1")
        else: a("s_nop 0")
        a(f"buffer_load_dwordx4 v{vD+e}, {sr(srd,4)}, s{so} offen lds")
        if e==1:
            a(f"s_cmp_eq_u32 s{sRX}, 10")
            a(f"s_cselect_b32 s{sT}, {-9*128}, s{sC128}")
            a(f"s_cselect_b32 s{sRX}, 0, s{sRX}")
            a(f"s_add_u32 s{sKX}, s{sKX}, s{sT}")
        if e==4:
            a(f"s_cmp_eq_u32 s{sRW}, 10")
            a(f"s_cselect_b32 s{sT}, s51, s{sStepW}")
            a(f"s_cselect_b32 s{sT2}, s3, s{sStepE}")
            a(f"s_cselect_b32 s{sRW}, 0, s{sRW}")
            a(f"s_add_u32 s{sKW}, s{sKW}, s{sT}")
            if g==1: a(f"s_add_u32 s{sKE}, s{sKE}, s{sT2}")
            a(f"s_add_u32 s{sBufD}, s{sBufD}, {STG}")
            a(f"s_cmp_eq_u32 s{sBufD}, {4*STG}")
            a(f"s_cselect_b32 s{sBufD}, 0, s{sBufD}")
    sC128=52
    a(f"s_movk_i32 s{sC128}, 128")
    a(f"s_cmp_lt_u32 s{sWv}, 4")
    a("s_cbranch_scc0 Lproj_pre1")
    for g in range(2):
        if g==1: a.label("Lproj_pre1")
        for e in range(5): dma(g,e)
        if g==0: a("s_branch Lproj_pre2")
    a.label("Lproj_pre2")
    a(f"s_and_b32 s{sT}, s{sWv}, 3")
    a(f"s_lshl_b32 s{sTT}, s{sMB}, 2")
    a(f"s_add_u32 s{sTT}, s{sTT}, s{sT}")
    a(f"s_lshl_b32 s{sT}, s{sT}, 12")
    a(f"v_bfe_u32 v{vT}, v{vN}, 1, 3")
    a(f"v_xor_b32 v{vT}, v{vT}, v{vH}")
    a(f"v_lshlrev_b32 v{vT}, 4, v{vT}")
    a(f"v_lshlrev_b32 v{vXb}, 7, v{vN}")
    a(f"v_add_u32 v{vXb}, v{vXb}, v{vT}")
    a(f"v_add_u32 v{vXb}, s{sT}, v{vXb}")
    a(f"v_bfe_u32 v{vT4}, v{vLane}, 2, 2")
    a(f"v_lshl_add_u32 v{vT4}, v{vH}, 3, v{vT4}")
    a(f"v_bfe_u32 v{vT5}, v{vLane}, 4, 1")
    a(f"v_and_b32 v{vT}, 3, v{vLane}")
    a(f"v_lshl_add_u32 v{vT5}, v{vT5}, 2, v{vT}")
    a(f"s_cmp_lt_u32 s{sNB}, 8")
    a(f"s_mov_b32 s{sHS}, {KV_BYTES}"); a(f"s_cselect_b32 s{sHS}, {QH_BYTES}, s{sHS}")
    a(f"s_cselect_b32 s{sScale}, {fbits(CQ)}, 1.0")
    a(f"s_lshr_b32 s{sT}, s{sTT}, 3")
    a(f"s_mul_i32 s{sT}, s{sT}, {CHUNK}")
    a(f"s_add_u32 s49, s{sT}, {WS_KV}")
    a(f"s_and_b32 s50, s{sTT}, 7")
    a(f"v_and_b32 v{vT}, 0x13, v{vN}")
    a(f"v_and_b32 v{vT2}, 4, v{vN}")
    a(f"v_lshl_or_b32 v{vT}, v{vT2}, 1, v{vT}")
    a(f"v_and_b32 v{vT2}, 8, v{vN}")
    a(f"v_lshrrev_b32 v{vT2}, 1, v{vT2}")
    a(f"v_or_b32 v27, v{vT}, v{vT2}")
    a(f"s_mov_b32 s{sBufR}, 0")
    a(f"s_mov_b32 s{sIt}, 0")
    for i in range(48): a(f"v_mov_b32 v{ACC[0]+i}, 0")
    a(f"s_cmp_lt_u32 s{sWv}, 4")
    a("s_cbranch_scc0 Lproj_g1")
    a(f"s_cmp_ge_u32 s{sNB}, 12")
    a("s_cbranch_scc1 Lproj_V0")
    a("s_branch Lproj_Q0")
    a.label("Lproj_g1")
    a(f"s_cmp_ge_u32 s{sNB}, 12")
    a("s_cbranch_scc1 Lproj_V1")
    a(f"s_cmp_eq_u32 s{sNB}, 0")
    a("s_cbranch_scc1 Lproj_Q1k")
    a(f"s_cmp_eq_u32 s{sNB}, 1")
    a("s_cbranch_scc1 Lproj_Q1v")
    a(f"s_cmp_eq_u32 s{sNB}, 2")
    a("s_cbranch_scc1 Lproj_Q1g")
    a("s_branch Lproj_Q1")

    def path(name,g,typ,extra):
        tiles=[0,1,2] if g==0 else [3,4]
        kinds=[(typ,t) for t in tiles]
        if extra: kinds.append((extra,5))
        nt=len(kinds)
        a.label(name)
        for i,(k,t) in enumerate(kinds):
            d=vWb+i
            if k=='Q' and t<4:
                a(f"v_lshrrev_b32 v{vT}, 2, v{vT5}")
                a(f"v_mul_u32_u24 v{vT}, 20, v{vT}")
                a(f"v_and_b32 v{vT2}, 1, v{vT5}")
                a(f"v_lshl_add_u32 v{vT}, v{vT2}, 1, v{vT}")
                a(f"v_bfe_u32 v{vT2}, v{vT5}, 1, 1")
                a(f"v_add3_u32 v{vT}, v{vT}, v{vT2}, {5*t}")
            elif k=='Q':
                a(f"v_mul_u32_u24 v{vT}, 5, v{vT5}")
                a(f"v_add_u32 v{vT}, 4, v{vT}")
            elif k=='V':
                a(f"v_add_u32 v{vT}, {8*t}, v{vT5}")
            elif k=='k':
                a(f"v_and_b32 v{vT2}, 1, v{vT5}")
                a(f"v_lshlrev_b32 v{vT}, 1, v{vT2}")
                a(f"v_bfe_u32 v{vT2}, v{vT5}, 1, 1")
                a(f"v_add_u32 v{vT}, v{vT}, v{vT2}")
                a(f"v_cmp_lt_u32 vcc, 3, v{vT5}")
                a("s_nop 1")
                a(f"v_cndmask_b32 v{vT}, v{vT}, 4, vcc")
            elif k=='v':
                a(f"v_min_u32 v{vT}, 4, v{vT5}")
            if k in 'QV':
                a(f"v_mul_u32_u24 v{d}, 320, v{vT4}")
                a(f"v_lshl_add_u32 v{d}, v{vT}, 3, v{d}")
                a(f"v_add_u32 v{d}, {WO}, v{d}")
            elif k in 'kv':
                a(f"v_mul_u32_u24 v{d}, 40, v{vT4}")
                a(f"v_lshl_add_u32 v{d}, v{vT}, 3, v{d}")
                a(f"v_add_u32 v{d}, {EO}, v{d}")
            else:
                a(f"v_lshlrev_b32 v{d}, 4, v{vH}")
                a(f"v_add_u32 v{d}, {EO}, v{d}")
        def addr_update():
            a(f"v_add_u32 v{vXa}, s{sBufR}, v{vXb}")
            for i in range(nt): a(f"v_add_u32 v{vWa+i}, s{sBufR}, v{vWb+i}")
            for ks in range(1,4): a(f"v_xor_b32 v{vXa+ks}, {32*ks}, v{vXa}")
            a(f"s_add_u32 s{sBufR}, s{sBufR}, {STG}")
            a(f"s_cmp_eq_u32 s{sBufR}, {4*STG}")
            a(f"s_cselect_b32 s{sBufR}, 0, s{sBufR}")
        def nreads():
            return 1+sum(1 if k=='g' else 2 for k,t in kinds)
        def reads(ks,f):
            r=[f"ds_read_b128 {vr(FX[f],4)}, v{vXa+ks}"]
            for i,(k,t) in enumerate(kinds):
                if k in 'QV':
                    r.append(f"ds_read_b64_tr_b16 {vr(FW[f][i],2)}, v{vWa+i} offset:{5120*ks}")
                    r.append(f"ds_read_b64_tr_b16 {vr(FW[f][i]+2,2)}, v{vWa+i} offset:{5120*ks+1280}")
                elif k in 'kv':
                    r.append(f"ds_read_b64_tr_b16 {vr(FW[f][i],2)}, v{vWa+i} offset:{640*ks}")
                    r.append(f"ds_read_b64_tr_b16 {vr(FW[f][i]+2,2)}, v{vWa+i} offset:{640*ks+160}")
                else:
                    r.append(f"ds_read_b128 {vr(FW[f][i],4)}, v{vWa+i} offset:{32*ks}")
            return r
        def mfmas(f):
            r=[]
            for i,(k,t) in enumerate(kinds):
                if k in 'Vv': A_,B_=FX[f],FW[f][i]
                else: A_,B_=FW[f][i],FX[f]
                r.append(f"v_mfma_f32_32x32x16_bf16 {vr(ACC[i],16)}, {vr(A_,4)}, {vr(B_,4)}, {vr(ACC[i],16)}")
            return r
        def cap(fn,*args):
            n=len(a.l); fn(*args); r=[x.strip() for x in a.l[n:]]; del a.l[n:]; return r
        def inter(ms,fill):
            per=-(-len(fill)//len(ms))
            for i,m in enumerate(ms):
                a(m)
                for x in fill[i*per:(i+1)*per]: a(x)
        nr=nreads()
        addr_update()
        for e in range(5): dma(g,e)
        dma(g,0); dma(g,1)
        if prof: a("s_memtime s[80:81]")
        a("s_waitcnt vmcnt(7)")
        a("s_barrier")
        if prof: a("s_memtime s[68:69]"); a("s_waitcnt lgkmcnt(0)")
        for x in reads(0,0)+reads(1,1): a(x)
        a.label(name+"_loop")
        a(f"s_waitcnt lgkmcnt({nr})")
        inter(mfmas(0), reads(2,2)+cap(dma,g,2))
        a(f"s_waitcnt lgkmcnt({nr})")
        inter(mfmas(1), reads(3,3)+cap(dma,g,3)+cap(dma,g,4))
        a(f"s_waitcnt lgkmcnt({nr})")
        m2=mfmas(2)
        a(m2[0])
        a(f"s_cmp_lt_u32 s{sIt}, 7")
        a(f"s_cselect_b32 s{SX+2}, s{SX+2}, 0")
        a(f"s_cselect_b32 s{SW+2}, s{SW+2}, 0")
        a(f"s_cselect_b32 s{SE+2}, s{SE+2}, 0")
        addr_update()
        a("s_waitcnt vmcnt(5) lgkmcnt(0)")
        a("s_barrier")
        inter(m2[1:], reads(0,0)+cap(dma,g,0))
        inter(mfmas(3), reads(1,1)+cap(dma,g,1))
        a(f"s_add_u32 s{sIt}, s{sIt}, 1")
        a(f"s_cmp_lt_u32 s{sIt}, 10")
        a(f"s_cbranch_scc1 {name}_loop")
        a("s_nop 7")
        if prof: a("s_memtime s[70:71]")
        a("s_waitcnt lgkmcnt(0)")
        TMP=FX[0]
        if typ=='Q':
            a(f"s_cmp_lt_u32 s{sNB}, 8")
            a(f"s_cselect_b64 vcc, -1, 0")
            a(f"v_cndmask_b32 v{vT}, v27, v{vN}, vcc")
            a(f"v_lshlrev_b32 v{vOm}, 9, v{vH}")
            a(f"v_lshl_add_u32 v{vOm}, v{vT}, 4, v{vOm}")
            a(f"v_mul_lo_u32 v{vOr}, v{vH}, s{sHS}")
            a(f"v_lshl_add_u32 v{vOr}, v{vT}, 3, v{vOr}")
            a(f"s_mul_i32 s{sT}, s{sNB}, {8*QH_BYTES}")
            a(f"s_lshl_b32 s{sT2}, s{sTT}, 10")
            a(f"s_add_u32 s{sOm}, s{sT}, s{sT2}")
            a(f"s_lshl_b32 s{sT2}, s{sTT}, 8")
            a(f"s_add_u32 s{sOr}, s{sT}, s{sT2}")
            a(f"s_add_u32 s{sOr}, s{sOr}, 65536")
            a(f"s_cmp_lt_u32 s{sNB}, 8")
            a(f"s_cbranch_scc1 {name}_isq")
            a(f"s_sub_u32 s{sT}, s{sNB}, 8")
            a(f"s_mul_i32 s{sT}, s{sT}, {8*KV_BYTES}")
            a(f"s_add_u32 s{sT}, s{sT}, s49")
            a(f"s_lshl_b32 s{sT2}, s50, 10")
            a(f"s_add_u32 s{sOm}, s{sT}, s{sT2}")
            a(f"s_lshl_b32 s{sT2}, s50, 8")
            a(f"s_add_u32 s{sOr}, s{sT}, s{sT2}")
            a(f"s_add_u32 s{sOr}, s{sOr}, 8192")
            a.label(name+"_isq")
            a(f"v_mov_b32 v{vT3}, s{sScale}")
            a("s_nop 4")
        else:
            a("s_nop 15")
        tp=TMP
        for i,(k,t) in enumerate(kinds):
            acc=ACC[i]
            if k=='Q':
                for r in range(16): a(f"v_mul_f32 v{acc+r}, v{acc+r}, v{vT3}")
            if k!='g':
                for r in range(8): a(f"v_cvt_pk_bf16_f32 v{tp+r}, v{acc+2*r}, v{acc+2*r+1}")
            if k=='Q' and t<4:
                for hh in range(2):
                    a(f"s_mul_i32 s{sT}, s{sHS}, {t+4*hh}")
                    a(f"s_add_u32 s{sT}, s{sT}, s{sOm}")
                    a(f"buffer_store_dwordx4 {vr(tp+4*hh,4)}, v{vOm}, {sr(SWS,4)}, s{sT} offen")
            elif k=='Q':
                for rg in range(4):
                    a(f"s_mul_i32 s{sT}, s{sHS}, {2*rg}")
                    a(f"s_add_u32 s{sT}, s{sT}, s{sOr}")
                    a(f"buffer_store_dwordx2 {vr(tp+2*rg,2)}, v{vOr}, {sr(SWS,4)}, s{sT} offen")
            elif k in 'Vv':
                if k=='V':
                    a(f"v_add_u32 v{vT}, {32*t}, v{vN}")
                    a(f"v_mul_u32_u24 v{vT2}, 205, v{vT}")
                    a(f"v_lshrrev_b32 v{vT2}, 12, v{vT2}")
                    a(f"v_mul_u32_u24 v{vT4}, 20, v{vT2}")
                    a(f"v_sub_u32 v{vT}, v{vT}, v{vT4}")
                else:
                    a(f"v_mov_b32 v{vT}, v{vN}")
                a(f"v_and_b32 v{vT4}, 0x13, v{vT}")
                a(f"v_and_b32 v{vT5}, 4, v{vT}")
                a(f"v_lshl_or_b32 v{vT4}, v{vT5}, 1, v{vT4}")
                a(f"v_and_b32 v{vT5}, 8, v{vT}")
                a(f"v_lshrrev_b32 v{vT5}, 1, v{vT5}")
                a(f"v_or_b32 v{vT4}, v{vT4}, v{vT5}")
                a(f"v_mul_u32_u24 v{vT5}, 320, v{vH}")
                a(f"v_lshl_add_u32 v{vT4}, v{vT4}, 4, v{vT5}")
                if k=='V':
                    a(f"s_mov_b32 s{sT}, {KV_BYTES}")
                    a(f"v_mul_lo_u32 v{vT2}, v{vT2}, s{sT}")
                    a(f"v_add_u32 v{vT4}, v{vT4}, v{vT2}")
                    a(f"s_sub_u32 s{sT}, s{sNB}, 12")
                    a(f"s_mul_i32 s{sT}, s{sT}, {8*KV_BYTES}")
                else:
                    a(f"s_mov_b32 s{sT}, {32*KV_BYTES}")
                    a(f"v_cmp_gt_u32 vcc, 20, v{vN}")
                    a("s_nop 1")
                    a("s_and_b64 exec, exec, vcc")
                a(f"s_add_u32 s{sT}, s{sT}, s49")
                a(f"s_mul_i32 s{sT2}, s50, 1280")
                a(f"s_add_u32 s{sT}, s{sT}, s{sT2}")
                a(f"s_add_u32 s{sT}, s{sT}, 10240")
                a(f"buffer_store_dwordx4 {vr(tp,4)}, v{vT4}, {sr(SWS,4)}, s{sT} offen")
                a(f"buffer_store_dwordx4 {vr(tp+4,4)}, v{vT4}, {sr(SWS,4)}, s{sT} offen offset:640")
            elif k=='k':
                a(f"v_lshlrev_b32 v{vT}, 9, v{vH}")
                a(f"v_lshl_add_u32 v{vT}, v27, 4, v{vT}")
                a(f"v_lshlrev_b32 v{vT2}, 3, v27")
                a(f"s_add_u32 s{sT}, s49, {32*KV_BYTES}")
                a(f"s_lshl_b32 s{sT2}, s50, 10")
                a(f"s_add_u32 s{sT2}, s{sT2}, s{sT}")
                a(f"buffer_store_dwordx4 {vr(tp,4)}, v{vT}, {sr(SWS,4)}, s{sT2} offen")
                a(f"s_lshl_b32 s{sT2}, s50, 8")
                a(f"s_add_u32 s{sT2}, s{sT2}, s{sT}")
                a(f"s_add_u32 s{sT2}, s{sT2}, 8192")
                a("s_mov_b32 exec_hi, 0")
                a(f"buffer_store_dwordx2 {vr(tp+4,2)}, v{vT2}, {sr(SWS,4)}, s{sT2} offen")
            elif k=='g':
                a(f"v_cvt_pk_bf16_f32 v{vT}, v{acc}, v{acc}")
                a(f"v_lshlrev_b32 v{vT}, 16, v{vT}")
                a(f"v_mul_f32 v{vT}, 0xbfb8aa3b, v{vT}")
                a(f"v_exp_f32 v{vT}, v{vT}")
                a("s_nop 0")
                a(f"v_add_f32 v{vT}, 1.0, v{vT}")
                a(f"v_rcp_f32 v{vT}, v{vT}")
                a("s_nop 0")
                a(f"v_cvt_pk_bf16_f32 v{vT}, v{vT}, v{vT}")
                a(f"v_lshlrev_b32 v{vT}, 16, v{vT}")
                a(f"v_sub_f32 v{vT2}, 1.0, v{vT}")
                a(f"v_cvt_pk_bf16_f32 v{vT2}, v{vT2}, v{vT2}")
                a(f"v_lshlrev_b32 v{vT2}, 16, v{vT2}")
                a(f"v_lshlrev_b32 v{vT4}, 2, v{vN}")
                a(f"s_lshl_b32 s{sT}, s{sTT}, 7")
                a(f"s_add_u32 s{sT}, s{sT}, {WS_G}")
                a(f"s_add_u32 s{sT2}, s{sT}, 8192")
                a("s_mov_b32 exec_hi, 0")
                a(f"buffer_store_dword v{vT}, v{vT4}, {sr(SWS,4)}, s{sT} offen")
                a(f"buffer_store_dword v{vT2}, v{vT4}, {sr(SWS,4)}, s{sT2} offen")
            tp+=8
        if prof: prof_end(a,64,66,72,SWS,sWv,8,0x40000,mids=(76,78,80,68,70))
        a("s_endpgm")
    path("Lproj_Q0",0,'Q',None)
    path("Lproj_V0",0,'V',None)
    path("Lproj_Q1",1,'Q',None)
    path("Lproj_V1",1,'V',None)
    path("Lproj_Q1k",1,'Q','k')
    path("Lproj_Q1v",1,'Q','v')
    path("Lproj_Q1g",1,'Q','g')
    a.label("Lproj_end")
    a("s_endpgm")
    txt=a.text()
    L=txt.split("\n")
    if 'nomf' in var: L=[x for x in L if 'v_mfma' not in x]
    if 'nord' in var: L=[x for x in L if 'ds_read' not in x]
    if 'nodma' in var: L=[x for x in L if ' lds' not in x]
    txt="\n".join(L)
    return txt, NV, 256, 512, 4*STG
```

```python
import sys, argparse
from gen_common import *
import os
if os.environ.get('ATX'):
    from gen_attn_x import gen_attn
else:
    from gen_attn import gen_attn
HDR=open('gated_mix__grouped_kv_mqa__mha_block__prompt.s.ref').read().split('; Override launch')[0]

def kd(name,nv,ns=96):
    if isinstance(nv,tuple): acc,nv=nv
    else: acc=(nv+3)//4*4
    return f""".p2align 6
.amdhsa_kernel {name}
  .amdhsa_next_free_vgpr {nv}
  .amdhsa_next_free_sgpr {ns}
  .amdhsa_accum_offset {acc}
  .amdhsa_group_segment_fixed_size 0
  .amdhsa_kernarg_size 96
  .amdhsa_user_sgpr_count 2
  .amdhsa_user_sgpr_kernarg_segment_ptr 1
  .amdhsa_system_sgpr_workgroup_id_x 1
.end_amdhsa_kernel
"""
def build(kernels):
    o=HDR
    for n,t,nv,g,b,l in kernels:
        o+=f"; @launch kernel={n} grid=({g},1,1) block=({b},1,1) lds={l}\n"
    o+='.amdgcn_target "amdgcn-amd-amdhsa--gfx950"\n.text\n'
    for n,t,nv,g,b,l in kernels:
        o+=f".globl {n}\n.p2align 8\n.type {n},@function\n{n}:\n{t}\n"
    o+='.section .rodata,"a"\n'
    for n,t,nv,g,b,l in kernels:
        o+=kd(n,nv)
    return o
if __name__=="__main__":
    ap=argparse.ArgumentParser()
    ap.add_argument("--nq",type=int,default=1)
    ap.add_argument("--only",default="")
    ap.add_argument("--prof",action="store_true")
    ap.add_argument("--var",default="")
    ap.add_argument("--pvar",default="map84")
    ap.add_argument("--pf",type=int,default=1)
    ap.add_argument("--early",type=int,default=1)
    ap.add_argument("--outv",type=int,default=2)
    ap.add_argument("--pd",type=int,default=2)
    ap.add_argument("--sto",default="none")
    ap.add_argument("--st",default="sc0_sc1")
    ap.add_argument("--wsoff",type=int,default=0)
    ap.add_argument("--dbgk",action="store_true")
    ap.add_argument("--rot",type=int,default=0)
    ap.add_argument("--roto",type=int,default=0)
    ap.add_argument("--prio",type=int,default=1)
    ap.add_argument("--zrows",type=int,default=1)
    ap.add_argument("-o",default="gated_mix__grouped_kv_mqa__mha_block__prompt.s")
    args=ap.parse_args()
    ks=[]
    if args.only in ("","proj"):
        try:
            from gen_proj import gen_proj
            t,nv,g,b,l=gen_proj(prof=args.prof,rot=args.rot,var=args.pvar); ks.append(("proj_kernel",t,nv,g,b,l))
        except ImportError: pass
    if args.only in ("","attn"):
        t,nv,b=gen_attn(args.nq,prof=args.prof,var=args.var,prio=args.prio,zrows=args.zrows,pf=args.pf,early=args.early); ks.append(("attn_kernel",t,nv,256,b,163840))
    if args.only in ("","out"):
        try:
            import gen_out as _go; _go.OUT_PD=args.pd
            from gen_out import gen_out
            if args.outv==2:
                import gen_out2; t,nv,g,b,l=gen_out2.gen_out(prof=args.prof,PD=args.pd,m81=(args.pf==2))
            else: t,nv,g,b,l=gen_out(prof=args.prof,rot=args.roto)
            pass; ks.append(("out_kernel",t,nv,g,b,l))
        except ImportError: pass
    if args.dbgk:
        t=f"""  s_cmp_ge_u32 s2, 1
  s_cbranch_scc1 Ldbg_end
  s_load_dwordx4 s[4:7], s[0:1], 80
  v_and_b32 v1, 3, v0
  v_lshrrev_b32 v2, 2, v0
  v_lshlrev_b32 v1, 2, v1
  ; lane group g=lane>>2 : 0 proj wg0, 1 attn wg0, 2 out wg0, 3 attn last wave of wg 128
  v_mov_b32 v3, {WS_END+0x40000}
  v_cmp_eq_u32 vcc, 1, v2
  v_mov_b32 v4, {WS_END}
  s_nop 1
  v_cndmask_b32 v3, v3, v4, vcc
  v_cmp_eq_u32 vcc, 2, v2
  v_mov_b32 v4, {WS_END+0x80000}
  s_nop 1
  v_cndmask_b32 v3, v3, v4, vcc
  v_cmp_eq_u32 vcc, 3, v2
  v_mov_b32 v4, {WS_END+(128*16+15)*32}
  s_nop 1
  v_cndmask_b32 v3, v3, v4, vcc
  v_add_u32 v3, v3, v1
  v_lshlrev_b32 v5, 2, v0
  s_waitcnt lgkmcnt(0)
  s_mov_b64 exec, 0xffff
  global_load_dword v6, v3, s[6:7]
  s_waitcnt vmcnt(0)
  global_store_dword v5, v6, s[4:5]
Ldbg_end:
  s_endpgm"""
        ks.append(("dbg_kernel",t,16,1,64,0))
    if args.wsoff:
        def addoff(t):
            L=t.split("\n"); out=[]; done=False
            for x in L:
                out.append(x)
                if not done and x.strip()=="s_waitcnt lgkmcnt(0)":
                    out.append(f"  s_add_u32 s4, s4, {args.wsoff<<20}"); out.append("  s_addc_u32 s5, s5, 0"); done=True
            return "\n".join(out)
        ks=[(n,addoff(t),nv,g,b,l) for n,t,nv,g,b,l in ks]
    if args.st:
        import re
        def stf(n): return (args.st if (n!="out_kernel" or args.sto=="same") else args.sto).replace("_"," ").replace("none","")
        ks=[(n,"\n".join((x+" "+stf(n)) if x.strip().startswith("buffer_store") else x for x in t.split("\n")),nv,g,b,l) for n,t,nv,g,b,l in ks]
    open(args.o,"w").write(build(ks))
```

```python
from gen_common import *

def gen_attn(NQ=1, prof=False, var='', prio=1, zrows=1, pf=1, early=1):
    NW=16//NQ
    NSTEP=160//NW
    a=A()
    NSB = 2 if NQ==1 else 4
    DQ = NSB//2
    S=[16+16*i for i in range(NSB)]
    p=16+16*NSB
    O=[p+16*i for i in range(NQ)]
    p+=16*NQ
    Qm=[p+4*i for i in range(NQ)]; p+=4*NQ
    Km=[p,p+4]; p+=8
    Kr=[p,p+4]; p+=8
    V=[p,p+8]; p+=16
    Qr=[p+2*i for i in range(NQ)]; p+=2*NQ
    WT=p; p+=8
    vWA=p; vWB=p+1; p+=2
    NV=p
    vIDX=1; vKm=2; vKr=3; vV=4; vL16=5; vG=[6,7]; vT=8; vT2=9; vM=[10,11]; vLane=12; vR8=13
    sHQ=12; sQB=13; sKV=14; sW=15; sT=16; sT2=17; sCH=18; sSYNC=19; sRETRY=20; sQT=22
    MV=24; MLO=26; MHI=28; sM0=32; sSRC=33
    def steps_needed(nchunks): return -(-(20*nchunks)//NW)
    a("s_cmp_ge_u32 s2, 256")
    a("s_cbranch_scc1 Lattn_end")
    a("s_load_dwordx2 s[4:5], s[0:1], 88")
    a("s_load_dwordx2 s[6:7], s[0:1], 32")
    a("s_load_dwordx2 s[38:39], s[0:1], 56")
    if prof:
        a("s_memtime s[40:41]"); a("s_memrealtime s[50:51]")
    a(f"v_and_b32 v{vLane}, 63, v0")
    a(f"v_lshrrev_b32 v{vT}, 6, v0")
    a(f"v_lshlrev_b32 v{vL16}, 4, v{vLane}")
    a(f"v_readfirstlane_b32 s{sW}, v{vT}")
    a("s_and_b32 s16, s2, 7")
    a("s_lshr_b32 s17, s2, 3")
    a(f"s_and_b32 s{sQB}, s17, 3")
    a("s_lshr_b32 s17, s17, 2")
    a("s_lshl_b32 s16, s16, 2")
    a("s_and_b32 s23, s17, 3")
    a("s_add_u32 s16, s16, s23")
    a("s_lshr_b32 s17, s17, 2")
    a("s_lshl_b32 s23, s17, 5")
    a(f"s_add_u32 s{sHQ}, s16, s23")
    a("s_cmp_eq_u32 s17, 0")
    a(f"s_cselect_b32 s{sKV}, 32, s16")
    a(f"s_mul_i32 s{sKV}, s{sKV}, {KV_BYTES}")
    a(f"s_add_u32 s{sKV}, s{sKV}, {WS_KV}")
    a(f"s_lshl_b32 s{sM0}, s{sW}, 10")
    a(f"s_add_u32 s{sSRC}, s{sM0}, s{sKV}")
    a(f"s_lshl_b32 s{sQT}, s{sQB}, 4")
    a(f"s_mul_i32 s16, s{sW}, {NQ}")
    a(f"s_add_u32 s{sQT}, s{sQT}, s16")
    a(f"v_and_b32 v{vT}, 31, v{vLane}")
    a(f"v_lshlrev_b32 v{vR8}, 3, v{vT}")
    a(f"v_lshlrev_b32 v{vT2}, 2, v{vT}")
    a(f"s_mov_b32 s10, {WS_END}")
    a("s_mov_b32 s11, 0x00020000")
    a(f"s_mul_i32 s16, s{sHQ}, {QH_BYTES}")
    a(f"s_lshl_b32 s23, s{sQT}, 10")
    a("s_add_u32 s23, s23, s16")
    a(f"s_lshl_b32 s30, s{sQT}, 8")
    a("s_add_u32 s30, s30, s16")
    a("s_add_u32 s30, s30, 65536")
    a("s_lshl_b32 s31, s17, 13")
    a(f"s_lshl_b32 s16, s{sQT}, 7")
    a("s_add_u32 s31, s31, s16")
    a(f"s_add_u32 s31, s31, {WS_G}")
    a(f"s_mov_b32 m0, s{sM0}")
    a("s_waitcnt lgkmcnt(0)")
    a("s_mov_b32 s8, s4")
    a("s_mov_b32 s9, s5")
    def dma(s):
        a(f"buffer_load_dwordx4 v{vL16}, s[8:11], s{sSRC} offen lds")
        if s<NSTEP-1:
            a(f"s_add_u32 s{sM0}, s{sM0}, {NW*1024}")
            a(f"s_add_u32 s{sSRC}, s{sSRC}, {NW*1024}")
            a(f"s_mov_b32 m0, s{sM0}")
            a("s_nop 0")
    N1=steps_needed(1) if not early else 16//NW
    dma(0)
    for i in range(NQ):
        a(f"buffer_load_dwordx4 {vr(Qm[i],4)}, v{vL16}, s[8:11], s23 offen offset:{1024*i}")
    for i in range(NQ):
        a(f"buffer_load_dwordx2 {vr(Qr[i],2)}, v{vR8}, s[8:11], s30 offen offset:{256*i}")
    for s in range(1,N1): dma(s)
    for i in range(NQ):
        a(f"buffer_load_dword v{vG[i]}, v{vT2}, s[8:11], s31 offen offset:{128*i}")
    sF=21
    a(f"s_mul_i32 s{sF}, s2, {NW}")
    a(f"s_add_u32 s{sF}, s{sF}, s{sW}")
    a(f"s_mul_i32 s16, s{sF}, 5243")
    a("s_lshr_b32 s16, s16, 20")
    a("s_mul_i32 s17, s16, 200")
    a(f"s_sub_u32 s17, s{sF}, s17")
    a("s_mul_i32 s23, s17, 205")
    a("s_lshr_b32 s23, s23, 10")
    a("s_mul_i32 s30, s23, 5")
    a("s_sub_u32 s17, s17, s30")
    a("s_cmp_lt_u32 s23, 20")
    a("s_cselect_b32 s36, s6, s38")
    a("s_cselect_b32 s37, s7, s39")
    a("s_cselect_b32 s30, 0, 20")
    a("s_sub_u32 s23, s23, s30")
    a("s_lshl_b32 s23, s23, 2")
    a(f"s_cmp_lt_u32 s{sF}, 1600")
    a(f"s_cselect_b32 s38, {640*1280}, 0")
    a("s_mov_b32 s39, 0x00020000")
    a(f"v_lshrrev_b32 v{vT}, 4, v{vLane}")
    a(f"v_add_u32 v{vT}, s23, v{vT}")
    a(f"v_mul_u32_u24 v{vT2}, 205, v{vT}")
    a(f"v_lshrrev_b32 v{vT2}, 10, v{vT2}")
    a(f"v_mul_u32_u24 v{vWA}, 5, v{vT2}")
    a(f"v_sub_u32 v{vT}, v{vT}, v{vWA}")
    a(f"v_mul_u32_u24 v{vWA}, 40, v{vT2}")
    a(f"v_lshrrev_b32 v{vT2}, 1, v{vT}")
    a(f"v_mul_u32_u24 v{vT2}, 20, v{vT2}")
    a(f"v_and_b32 v{vWB}, 1, v{vT}")
    a(f"v_lshl_add_u32 v{vT2}, v{vWB}, 3, v{vT2}")
    a(f"v_cmp_eq_u32 vcc, 4, v{vT}")
    a(f"v_mov_b32 v{vWB}, {4*1280}")
    a(f"v_mov_b32 v{vT}, {20*1280}")
    a(f"v_cndmask_b32 v{vT2}, v{vT2}, 16, vcc")
    a(f"v_cndmask_b32 v{vWB}, v{vWB}, v{vT}, vcc")
    a(f"v_add_u32 v{vWA}, v{vWA}, v{vT2}")
    a(f"v_mul_u32_u24 v{vWA}, 1280, v{vWA}")
    a(f"v_and_b32 v{vT}, 15, v{vLane}")
    a(f"v_and_b32 v{vT2}, 12, v{vT}")
    a("s_cmp_lt_u32 s17, 4")
    a("s_cselect_b32 s30, -1, 0")
    a(f"v_and_b32 v{vT2}, s30, v{vT2}")
    a(f"v_add_u32 v{vT}, v{vT}, v{vT2}")
    a("s_lshr_b32 s30, s17, 1")
    a("s_lshl_b32 s30, s30, 5")
    a("s_and_b32 s17, s17, 1")
    a("s_lshl_b32 s17, s17, 2")
    a("s_add_u32 s30, s30, s17")
    a("s_mul_i32 s16, s16, 80")
    a("s_add_u32 s30, s30, s16")
    a("s_lshl_b32 s34, s30, 1")
    a(f"v_lshl_add_u32 v{vWA}, v{vT}, 1, v{vWA}")
    a(f"v_add_u32 v{vWB}, v{vWB}, v{vWA}")
    a(f"s_mov_b32 s{MV}, 0x000fffff")
    a(f"s_mov_b32 s{MV+1}, 0x000fffff")
    a(f"s_mov_b32 s{MLO}, -1")
    a(f"s_mov_b32 s{MLO+1}, 0")
    a(f"s_mov_b32 s{MHI}, 0")
    a(f"s_mov_b32 s{MHI+1}, -1")
    a(f"v_mov_b32 v{vIDX}, 0xdddddddd")
    if zrows:
        a(f"v_mov_b32 v{vT2}, 0")
        a("s_mov_b32 s16, 0x01100000")
        a("s_mov_b32 s17, 0x01100000")
        a("s_mov_b64 exec, s[16:17]")
        a(f"v_mov_b32 v{vT2}, 0x3f803f80")
        a("s_mov_b64 exec, -1")
    else:
        a(f"v_mov_b32 v{vT2}, 0x3f803f80")
    for b in range(2):
        for i in range(8): a(f"v_mov_b32 v{V[b]+i}, v{vT2}")
        a(f"v_mov_b32 v{Kr[b]}, 0x3f803f80"); a(f"v_mov_b32 v{Kr[b]+1}, 0x3f80")
        a(f"v_mov_b32 v{Kr[b]+2}, 0x3f803f80"); a(f"v_mov_b32 v{Kr[b]+3}, 0x3f80")
    a(f"s_mov_b32 s{sSYNC}, 2")
    a(f"s_mov_b32 s{sRETRY}, 0")
    a(f"v_lshrrev_b32 v{vT}, 5, v{vLane}")
    a(f"v_mul_u32_u24 v{vT}, 320, v{vT}")
    a(f"v_lshlrev_b32 v{vT2}, 1, v{vR8}")
    a(f"v_add_u32 v14, v{vT}, v{vT2}")
    a(f"v_add_u32 v14, 10240, v14")
    a.label("Lattn_zero")
    for i in range(NQ):
        for r in range(16): a(f"v_mov_b32 v{O[i]+r}, 0")
    for r in range(8,16): a(f"v_mov_b32 v{S[NSB-1]+r}, 0")
    a(f"s_cmp_lg_u32 s{sRETRY}, 0")
    a("s_cbranch_scc1 Lattn_start")
    a(f"s_waitcnt vmcnt({NQ})")
    a(f"s_mov_b64 exec, s[{MHI}:{MHI+1}]")
    for i in range(NQ):
        a(f"v_mov_b32 v{Qr[i]}, 0"); a(f"v_mov_b32 v{Qr[i]+1}, 0")
    a("s_mov_b64 exec, -1")
    a("s_barrier")
    if prof: a("s_memtime s[42:43]")
    a.label("Lattn_start")
    a(f"v_mov_b32 v{vKm}, v{vL16}")
    a(f"v_add_u32 v{vKr}, 8192, v{vR8}")
    a(f"v_mov_b32 v{vV}, v14")
    a(f"ds_read_b128 {vr(Km[0],4)}, v{vKm}")
    a(f"ds_read_b128 {vr(Km[1],4)}, v{vKm} offset:1024")
    a(f"s_mov_b64 exec, s[{MLO}:{MLO+1}]")
    a(f"ds_read2_b64 {vr(Kr[0],4)}, v{vKr} offset0:0 offset1:32")
    a(f"s_mov_b64 exec, s[{MV}:{MV+1}]")
    a(f"ds_read_b128 {vr(V[0],4)}, v{vV}")
    a(f"ds_read_b128 {vr(V[0]+4,4)}, v{vV} offset:640")
    a("s_mov_b64 exec, -1")
    a("s_waitcnt lgkmcnt(2)")
    for i in range(NQ):
        a(f"v_mfma_f32_32x32x8_bf16 {vr(S[i],16)}, {vr(Kr[0],2)}, {vr(Qr[i],2)}, 0")
        a(f"v_mfma_f32_32x32x16_bf16 {vr(S[i],16)}, {vr(Km[0],4)}, {vr(Qm[i],4)}, {vr(S[i],16)}")
    a(f"s_mov_b32 s{sCH}, 0")
    a(f"s_cmp_lg_u32 s{sRETRY}, 0")
    a("s_nop 9" if NQ==1 else "s_nop 7")
    a("s_cbranch_scc1 Lattn_havemax")
    for i in range(NQ):
        for r in range(0,16,2):
            if r==0: a(f"v_max_f32 v{vM[i]}, v{S[i]+r}, v{S[i]+r+1}")
            else: a(f"v_max3_f32 v{vM[i]}, v{S[i]+r}, v{S[i]+r+1}, v{vM[i]}")
    a.label("Lattn_havemax")
    for i in range(NQ):
        a(f"v_mov_b32 v{vT}, v{vM[i]}")
        a("s_nop 1")
        a(f"v_permlane32_swap_b32 v{vM[i]}, v{vT}")
        a("s_nop 1")
        a(f"v_max_f32 v{vM[i]}, v{vM[i]}, v{vT}")
        a(f"v_xor_b32 v{vM[i]}, 0x80000000, v{vM[i]}")
    a(f"s_mov_b64 exec, s[{MHI}:{MHI+1}]")
    for i in range(NQ):
        a(f"v_and_b32 v{vT}, 0xffff0000, v{vM[i]}")
        a(f"v_sub_f32 v{vT2}, v{vM[i]}, v{vT}")
        a(f"v_and_b32 v{Qr[i]}, 0xffff0000, v{vT2}")
        a(f"v_sub_f32 v{vT2}, v{vT2}, v{Qr[i]}")
        a(f"v_lshrrev_b32 v{Qr[i]+1}, 16, v{vT2}")
        a(f"v_lshrrev_b32 v{vT}, 16, v{vT}")
        a(f"v_or_b32 v{Qr[i]}, v{Qr[i]}, v{vT}")
    a("s_mov_b64 exec, -1")
    for i in range(NQ):
        for r in range(16): a(f"v_add_f32 v{S[i]+r}, v{S[i]+r}, v{vM[i]}")
    if prof:
        a("s_memtime s[44:45]"); a("s_waitcnt lgkmcnt(0)")
    if prio: a("s_setprio 3")
    KD = 2
    st={'next':N1}
    def chunk(kind):
        for t in range(8):
            for sub in range(NQ):
                u=t*NQ+sub
                cur=S[u%NSB]; nxt=S[(u+DQ)%NSB]; prv=S[(u-1)%NSB]
                pt,psub=divmod(u-1+8*NQ,NQ)
                nt,nsub=divmod(u+DQ,NQ)
                def e(i): a(f"v_exp_f32 v{cur+i}, v{cur+i}")
                a.c(f"--- tile {t} sub {sub}")
                e(0); e(1)
                a(f"v_smfmac_f32_32x32x32_bf16 {vr(O[psub],16)}, {vr(V[pt%2]+4,4)}, {vr(prv+8,8)}, v{vIDX}")
                e(2); e(3)
                if kind==0:
                    nd = 2 if (NSTEP-st['next']) > (8*NQ-u) else 1
                    for _ in range(nd):
                        if st['next']<NSTEP:
                            dma(st['next']); st['next']+=1
                e(4); e(5)
                if sub==0: a("s_waitcnt lgkmcnt(0)")
                krb=Kr[(nt>>1)%2]+2*(nt&1)
                a(f"v_mfma_f32_32x32x8_bf16 {vr(nxt,16)}, {vr(krb,2)}, {vr(Qr[nsub],2)}, 0")
                e(6); e(7); e(8); e(9)
                a(f"v_mfma_f32_32x32x16_bf16 {vr(nxt,16)}, {vr(Km[nt%2],4)}, {vr(Qm[nsub],4)}, {vr(nxt,16)}")
                e(10); e(11); e(12); e(13)
                if sub==0:
                    kt=t+KD
                    if kind==0 and t==(3 if early else 8-KD):
                        assert st['next']>=steps_needed(2)
                        a(f"s_waitcnt vmcnt({st['next']-steps_needed(2)})")
                        a("s_barrier")
                        if prof: a("s_memtime s[56:57]")
                    if kt==8:
                        if kind==1:
                            a("s_waitcnt vmcnt(0)")
                            a("s_barrier")
                            if prof: a("s_memtime s[58:59]")
                            a(f"s_cmp_ge_u32 s{sF}, 1600")
                            a("s_cbranch_scc1 Lattn_nowt")
                            a(f"s_lshl_b32 s16, s{sF}, 10")
                            a(f"s_add_u32 s16, s16, {WS_WT}")
                            for ee in range(4): a(f"v_lshl_or_b32 v{WT+ee}, v{WT+2*ee+1}, 16, v{WT+2*ee}")
                            a(f"buffer_store_dwordx4 {vr(WT,4)}, v{vL16}, s[8:11], s16 offen")
                            a.label("Lattn_nowt")
                        a(f"v_add_u32 v{vKr}, {CHUNK}, v{vKr}")
                    vt=t+1
                    voff = vt*1280 if vt<8 else CHUNK+(vt-8)*1280
                    koff = kt*1024 if kt<8 else CHUNK+(kt-8)*1024
                    SM0=f"v_smfmac_f32_32x32x32_bf16 {vr(O[sub],16)}, {vr(V[t%2],4)}, {vr(cur,8)}, v{vIDX}"
                    if 'smmid' not in var and 'smlast' not in var: a(SM0)
                    if 'kfirst' in var: a(f"ds_read_b128 {vr(Km[kt%2],4)}, v{vKm} offset:{koff}")
                    a(f"s_mov_b64 exec, s[{MV}:{MV+1}]")
                    a(f"ds_read_b128 {vr(V[vt%2],4)}, v{vV} offset:{voff}")
                    if 'smmid' in var: a(SM0)
                    a(f"ds_read_b128 {vr(V[vt%2]+4,4)}, v{vV} offset:{voff+640}")
                    if kt%2==0:
                        a(f"s_mov_b64 exec, s[{MLO}:{MLO+1}]")
                        j=kt%8
                        a(f"ds_read2_b64 {vr(Kr[(kt>>1)%2],4)}, v{vKr} offset0:{32*j} offset1:{32*j+32}")
                    a("s_mov_b64 exec, -1")
                    if 'kfirst' not in var: a(f"ds_read_b128 {vr(Km[kt%2],4)}, v{vKm} offset:{koff}")
                    if 'smlast' in var: a(SM0)
                else:
                    a(f"v_smfmac_f32_32x32x32_bf16 {vr(O[sub],16)}, {vr(V[t%2],4)}, {vr(cur,8)}, v{vIDX}")
                e(14); e(15)
        a(f"v_add_u32 v{vKm}, {CHUNK}, v{vKm}")
        a(f"v_add_u32 v{vV}, {CHUNK}, v{vV}")
    a(f"s_cmp_lg_u32 s{sRETRY}, 0")
    a("s_cbranch_scc1 Lattn_loop")
    a.label("Lattn_peel")
    chunk(0)
    assert st['next']==NSTEP
    for ee in range(8):
        a(f"buffer_load_ushort v{WT+ee}, v{vWA if ee<4 else vWB}, s[36:39], s34 offen offset:{(ee&3)*1280}")
    chunk(1)
    a(f"s_mov_b32 s{sCH}, 2")
    a(".p2align 6")
    if 'pad4' in var: a("s_nop 0")
    a.label("Lattn_loop")
    chunk(2)
    a(f"s_add_u32 s{sCH}, s{sCH}, 1")
    if prio:
        a(f"s_cmp_lt_u32 s{sCH}, 5")
        a("s_cbranch_scc1 Lattn_loop")
        a("s_setprio 2")
        a(f"s_cmp_eq_u32 s{sCH}, 5")
        a("s_cbranch_scc1 Lattn_loop")
        a("s_setprio 1")
        a(f"s_cmp_eq_u32 s{sCH}, 6")
        a("s_cbranch_scc1 Lattn_loop")
        a("s_setprio 0")
        if pf:
            a(f"s_cmp_lg_u32 s{sCH}, 7")
            a("s_cbranch_scc1 Lattn_nopf")
            a("s_lshr_b32 s16, s2, 3")
            a(f"s_mul_i32 s16, s16, {NW}")
            a(f"s_add_u32 s16, s16, s{sW}")
            a("s_lshl_b32 s16, s16, 10")
            if pf==1:
                a("s_and_b32 s17, s2, 1")
                a("s_mul_i32 s17, s17, 819200")
                a("s_add_u32 s16, s16, s17")
            a(f"s_add_u32 s16, s16, {WS_WT}")
            for k in range(-(-(800*pf)//(32*NW))):
                a(f"buffer_load_dword v{WT+4+k}, v{vL16}, s[8:11], s16 offen")
                a(f"s_add_u32 s16, s16, {32*NW*1024}")
            a.label("Lattn_nopf")
    a(f"s_cmp_lt_u32 s{sCH}, 8")
    a("s_cbranch_scc1 Lattn_loop")
    a.label("Lattn_loopend")
    lastu=8*NQ-1
    a(f"v_smfmac_f32_32x32x32_bf16 {vr(O[NQ-1],16)}, {vr(V[7%2]+4,4)}, {vr(S[lastu%NSB]+8,8)}, v{vIDX}")
    a("s_waitcnt lgkmcnt(0)")
    if prof:
        a("s_memtime s[46:47]"); a("s_waitcnt lgkmcnt(0)")
    a(f"s_lshr_b32 s16, s{sHQ}, 1")
    a("s_mul_i32 s16, s16, 2560")
    a(f"s_mul_i32 s17, s{sQT}, 81920")
    a("s_add_u32 s16, s16, s17")
    a(f"s_add_u32 s16, s16, {WS_O}")
    a(f"s_and_b32 s17, s{sHQ}, 1")
    a("s_lshl_b32 s23, s17, 10")
    a("s_add_u32 s23, s23, s16")
    a("s_lshl_b32 s17, s17, 3")
    a("s_add_u32 s16, s16, s17")
    a("s_add_u32 s16, s16, 2048")
    a(f"v_mov_b32 v{vT}, 0x5d800000")
    a("s_mov_b64 s[30:31], -1")
    a("s_nop 3")
    for i in range(NQ):
        a(f"s_mov_b64 exec, s[{MHI}:{MHI+1}]")
        a(f"v_mov_b32 v{O[i]+12}, v{O[i]+8}")
        a("s_mov_b64 exec, -1")
        a(f"v_cmp_lt_f32 vcc, v{O[i]+12}, v{vT}")
        a("s_nop 1")
        a("s_and_b64 s[30:31], s[30:31], vcc")
    a("s_cmp_eq_u64 s[30:31], -1")
    a("s_cbranch_scc0 Lattn_fallback")
    a.label("Lattn_ok")
    for i in range(NQ):
        a(f"v_rcp_f32 v{vT}, v{O[i]+12}")
        a("s_nop 0")
        a(f"v_mul_f32 v{vT}, v{vT}, v{vG[i]}")
        for r in range(12): a(f"v_mul_f32 v{O[i]+r}, v{O[i]+r}, v{vT}")
        for r in range(6): a(f"v_cvt_pk_bf16_f32 v{S[i]+r}, v{O[i]+2*r}, v{O[i]+2*r+1}")
        a(f"buffer_store_dwordx4 {vr(S[i],4)}, v{vL16}, s[8:11], s23 offen")
        a(f"s_mov_b64 exec, s[{MLO}:{MLO+1}]")
        a(f"buffer_store_dwordx2 {vr(S[i]+4,2)}, v{vL16}, s[8:11], s16 offen")
        a("s_mov_b64 exec, -1")
        if i<NQ-1:
            a("s_add_u32 s23, s23, 81920")
            a("s_add_u32 s16, s16, 81920")
    if prof: prof_end(a,40,50,52,8,sW,NW,0,mids=(42,44,56,58,46))
    a.label("Lattn_end")
    a("s_endpgm")
    a.label("Lattn_fallback")
    a(f"s_cmp_lg_u32 s{sRETRY}, 0")
    a("s_cbranch_scc1 Lattn_ok")
    a(f"s_mov_b32 s{sRETRY}, 1")
    a(f"s_mov_b64 exec, s[{MHI}:{MHI+1}]")
    for i in range(NQ):
        a(f"v_mov_b32 v{Qr[i]}, 0"); a(f"v_mov_b32 v{Qr[i]+1}, 0")
    a("s_mov_b64 exec, -1")
    for i in range(NQ): a(f"v_mov_b32 v{vM[i]}, 0xff800000")
    a(f"s_mov_b32 s{sT}, 0")
    a.label("Lattn_mloop")
    a(f"s_lshr_b32 s23, s{sT}, 3")
    a(f"s_mul_i32 s23, s23, {CHUNK}")
    a(f"s_and_b32 s{sT2}, s{sT}, 7")
    a(f"s_lshl_b32 s30, s{sT2}, 10")
    a("s_add_u32 s30, s30, s23")
    a(f"s_lshl_b32 s31, s{sT2}, 8")
    a("s_add_u32 s31, s31, s23")
    a(f"v_add_u32 v{vT}, s30, v{vL16}")
    a(f"v_add_u32 v{vT2}, s31, v{vR8}")
    a(f"ds_read_b128 {vr(Km[0],4)}, v{vT}")
    a(f"s_mov_b64 exec, s[{MLO}:{MLO+1}]")
    a(f"ds_read_b64 {vr(Kr[0],2)}, v{vT2} offset:8192")
    a("s_mov_b64 exec, -1")
    a("s_waitcnt lgkmcnt(0)")
    for i in range(NQ):
        a(f"v_mfma_f32_32x32x8_bf16 {vr(S[i],16)}, {vr(Kr[0],2)}, {vr(Qr[i],2)}, 0")
        a(f"v_mfma_f32_32x32x16_bf16 {vr(S[i],16)}, {vr(Km[0],4)}, {vr(Qm[i],4)}, {vr(S[i],16)}")
    a("s_nop 15")
    for i in range(NQ):
        for r in range(0,16,2):
            a(f"v_max3_f32 v{vM[i]}, v{S[i]+r}, v{S[i]+r+1}, v{vM[i]}")
    a(f"s_add_u32 s{sT}, s{sT}, 1")
    a(f"s_cmp_lt_u32 s{sT}, 64")
    a("s_cbranch_scc1 Lattn_mloop")
    a("s_branch Lattn_zero")
    txt=a.text()
    if var.startswith('no'):
        head,rest=txt.split("Lattn_peel:",1)
        body,tail=rest.split("Lattn_loopend:",1)
        L=body.split("\n")
        if 'nosm' in var: L=[x for x in L if 'v_smfmac' not in x]
        if 'noqk' in var: L=[x for x in L if 'v_mfma' not in x]
        if 'noexp' in var: L=[x for x in L if 'v_exp' not in x]
        if 'nods' in var: L=[x for x in L if 'ds_read' not in x]
        if 'noexec' in var: L=[x for x in L if 'exec' not in x]
        if 'nowait' in var: L=[x for x in L if 'lgkmcnt' not in x]
        txt=head+"Lattn_peel:"+"\n".join(L)+"Lattn_loopend:"+tail
        txt=txt.replace("s_cbranch_scc0 Lattn_fallback","s_nop 0",1)
    return txt, NV, 64*NW
```

```python
from gen_common import *

def gen_out(prof=False, rot=0, PD=2, m81=1):
    a=A()
    SWS=8; SO=12
    sMB=16; sNB=17; sWv=18; sT=19; sT2=20; sOB=21; sWB=22; sM=23
    vLane=1; vOo=2; vT=4; vT2=5; vQ=6; vI=7; vL16=8; vSt=9
    NST=10; NBUF=PD+1; STG=20480
    ACC=16
    FW=[36,56]
    FO=[76+16*i for i in range(NBUF)]
    NV=76+16*NBUF
    a("s_cmp_ge_u32 s2, 256")
    a("s_cbranch_scc1 Lout_end")
    a("s_load_dwordx2 s[4:5], s[0:1], 88")
    a("s_load_dwordx2 s[6:7], s[0:1], 72")
    if prof: prof_start(a,64,66)
    a(f"v_and_b32 v{vLane}, 63, v0")
    a(f"v_lshrrev_b32 v{vT}, 6, v0")
    a(f"v_lshlrev_b32 v{vL16}, 4, v{vLane}")
    a(f"v_readfirstlane_b32 s{sWv}, v{vT}")
    a(f"v_lshrrev_b32 v{vQ}, 4, v{vLane}")
    a(f"v_and_b32 v{vI}, 15, v{vLane}")
    a(f"s_and_b32 s{sT}, s2, 7")
    a(f"s_lshr_b32 s{sT2}, s2, 3")
    if m81:
        a(f"s_lshl_b32 s{sMB}, s{sT}, 2")
        a(f"s_and_b32 s24, s{sT2}, 3")
        a(f"s_add_u32 s{sMB}, s{sMB}, s24")
        a(f"s_lshr_b32 s{sNB}, s{sT2}, 2")
    else:
        a(f"s_lshr_b32 s{sMB}, s{sT}, 1")
        a(f"s_lshl_b32 s{sMB}, s{sMB}, 3")
        a(f"s_and_b32 s24, s{sT2}, 7")
        a(f"s_add_u32 s{sMB}, s{sMB}, s24")
        a(f"s_and_b32 s{sNB}, s{sT}, 1")
        a(f"s_lshl_b32 s{sNB}, s{sNB}, 2")
        a(f"s_lshr_b32 s{sT2}, s{sT2}, 3")
        a(f"s_add_u32 s{sNB}, s{sNB}, s{sT2}")
    a(f"v_lshlrev_b32 v{vOo}, 9, v{vQ}")
    a(f"v_lshl_add_u32 v{vOo}, v{vI}, 4, v{vOo}")
    a(f"s_mul_i32 s{sOB}, s{sMB}, {2*81920}")
    a(f"s_lshr_b32 s{sT}, s{sWv}, 1")
    a(f"s_mul_i32 s{sT}, s{sT}, 81920")
    a(f"s_add_u32 s{sOB}, s{sOB}, s{sT}")
    a(f"s_and_b32 s{sT}, s{sWv}, 1")
    a(f"s_lshl_b32 s{sT}, s{sT}, 8")
    a(f"s_add_u32 s{sOB}, s{sOB}, s{sT}")
    a(f"s_add_u32 s{sOB}, s{sOB}, {WS_O}")
    a(f"s_add_u32 s24, s{sOB}, 4096")
    a(f"s_mul_i32 s{sWB}, s{sNB}, {40*5120}")
    a(f"s_mul_i32 s{sM}, s{sWv}, 5120")
    a(f"s_add_u32 s{sWB}, s{sWB}, s{sM}")
    a(f"s_add_u32 s{sWB}, s{sWB}, {WS_WT}")
    a(f"s_add_u32 s25, s{sWB}, 4096")
    a(f"s_mov_b32 s{SWS+2}, {WS_END}"); a(f"s_mov_b32 s{SWS+3}, 0x00020000")
    a(f"s_mov_b32 s{SO+2}, {2048*1280}"); a(f"s_mov_b32 s{SO+3}, 0x00020000")
    a(f"s_mov_b32 m0, s{sM}")
    a("s_waitcnt lgkmcnt(0)")
    a(f"s_mov_b32 s{SWS}, s4"); a(f"s_mov_b32 s{SWS+1}, s5")
    a(f"s_mov_b32 s{SO}, s6"); a(f"s_mov_b32 s{SO+1}, s7")
    def loads(st):
        b=st%NBUF
        g=[]
        for t in range(5):
            pre=[]
            if t==0: pre=[f"s_add_u32 m0, s{sM}, {b*STG}","s_nop 0"]
            if t==4: pre=[f"s_add_u32 m0, s{sM}, {b*STG+4096}","s_nop 0"]
            if t<4: g.append(pre+[f"buffer_load_dwordx4 v{vL16}, {sr(SWS,4)}, s{sWB} offen offset:{t*1024} lds"])
            else: g.append(pre+[f"buffer_load_dwordx4 v{vL16}, {sr(SWS,4)}, s25 offen lds",
                                f"s_add_u32 s{sWB}, s{sWB}, {STG}", f"s_add_u32 s25, s25, {STG}"])
        for ks in range(4):
            so = sOB if ks<2 else 24
            x=[f"buffer_load_dwordx4 {vr(FO[b]+4*ks,4)}, v{vOo}, {sr(SWS,4)}, s{so} offen offset:{(ks&1)*2048}"]
            if ks==3: x+=[f"s_add_u32 s{sOB}, s{sOB}, 8192", "s_add_u32 s24, s24, 8192"]
            g.append(x)
        return g
    for st in range(PD):
        for g in loads(st):
            for x in g: a(x)
    a(f"s_lshl_b32 s{sT}, s{sMB}, 6")
    a(f"s_lshl_b32 s{sT2}, s{sWv}, 4")
    a(f"s_add_u32 s{sT}, s{sT}, s{sT2}")
    a(f"s_mul_i32 s{sT}, s{sT}, 1280")
    a(f"s_mul_i32 s{sT2}, s{sNB}, 160")
    a(f"s_add_u32 s{sT}, s{sT}, s{sT2}")
    a(f"v_mul_u32_u24 v{vSt}, 1280, v{vI}")
    a(f"v_lshl_add_u32 v{vT2}, v{vQ}, 3, v{vSt}")
    a(f"v_lshl_add_u32 v{vSt}, v{vQ}, 4, v{vSt}")
    a(f"v_add_u32 v{vT}, 40960, v{vL16}")
    def rd(st,ks):
        b=st%NBUF; off=b*STG+ks*5120
        base=vL16
        if off+4096>65535: base=vT; off-=40960
        return [f"ds_read_b128 {vr(FW[ks%2]+4*t,4)}, v{base} offset:{off+t*1024}" for t in range(5)]
    for st in range(NST):
        a(f"s_waitcnt vmcnt({9*(min(NST-1,st+PD-1)-st)})")
        a("s_barrier")
        if prof and st==0: a("s_memtime s[68:69]"); a("s_waitcnt lgkmcnt(0)")
        G=loads(st+PD) if st+PD<NST else []
        for x in rd(st,0): a(x)
        gi=0
        for ks in range(4):
            nxt = rd(st,ks+1) if ks<3 else []
            for x in nxt: a(x)
            for _ in range(2 if ks>0 else 3):
                if gi<len(G):
                    for x in G[gi]: a(x)
                    gi+=1
            a(f"s_waitcnt lgkmcnt({len(nxt)})")
            for t in range(5):
                c="0" if (st==0 and ks==0) else vr(ACC+4*t,4)
                a(f"v_mfma_f32_16x16x32_bf16 {vr(ACC+4*t,4)}, {vr(FW[ks%2]+4*t,4)}, {vr(FO[st%NBUF]+4*ks,4)}, {c}")
        assert gi==len(G)
    if prof: a("s_memtime s[70:71]")
    a("s_nop 7")
    for i in range(10): a(f"v_cvt_pk_bf16_f32 v{FW[0]+i}, v{ACC+2*i}, v{ACC+2*i+1}")
    a(f"buffer_store_dwordx4 {vr(FW[0],4)}, v{vSt}, {sr(SO,4)}, s{sT} offen")
    a(f"buffer_store_dwordx4 {vr(FW[0]+4,4)}, v{vSt}, {sr(SO,4)}, s{sT} offen offset:64")
    a(f"buffer_store_dwordx2 {vr(FW[0]+8,2)}, v{vT2}, {sr(SO,4)}, s{sT} offen offset:128")
    if prof: prof_end(a,64,66,72,SWS,sWv,4,0x80000,mids=(68,70))
    a.label("Lout_end")
    a("s_endpgm")
    return a.text(), NV, 256, 256, NBUF*STG
```

```python
from gen_common import *
import struct
CQ=(20**-0.5)*1.4426950408889634
def fbits(x): return struct.unpack("<I",struct.pack("<f",x))[0]

def gen_proj(prof=False, rot=1, var=''):
    a=A()
    STG=40960; XO=0; WO=16384; EO=36864
    SX=8; SW=12; SE=16; SWS=20
    sMB=24; sNB=25; sWv=26; sLD=27; sKX=28; sKW=29; sKE=30; sStepW=31; sStepE=32; sBufD=33; sBufR=34; sIt=35
    sTT=36; sHS=37; sOm=38; sOr=39; sScale=40; sM0a=41
    sT=46; sT2=47; sT3=48
    vLane=1; vD=2
    vXb=7; vXa=8
    vWb=12
    vWa=15
    vT=18; vT2=19; vT3=20; vN=21; vH=22; vOm=23; vOr=24; vT4=25; vT5=26
    ACC=[32,48,64]
    FX=[80,84,88,92]
    FW=[[96+12*f+4*i for i in range(3)] for f in range(4)]
    NV=144
    a("s_cmp_ge_u32 s2, 256")
    a("s_cbranch_scc1 Lproj_end")
    a("s_load_dwordx4 s[52:55], s[0:1], 0")
    a("s_load_dwordx4 s[56:59], s[0:1], 16")
    a("s_load_dwordx2 s[60:61], s[0:1], 48")
    a("s_load_dwordx2 s[62:63], s[0:1], 64")
    a("s_load_dwordx2 s[4:5], s[0:1], 88")
    if prof: prof_start(a,84,86)
    a(f"v_and_b32 v{vLane}, 63, v0")
    a(f"v_lshrrev_b32 v{vT}, 6, v0")
    a(f"v_and_b32 v{vN}, 31, v0")
    a(f"v_readfirstlane_b32 s{sWv}, v{vT}")
    a(f"v_lshrrev_b32 v{vH}, 5, v{vLane}")
    a(f"s_and_b32 s{sT}, s2, 7")
    a(f"s_lshr_b32 s{sT2}, s2, 3")
    if 'map84' in var:
        a(f"s_and_b32 s{sMB}, s{sT}, 1")
        a(f"s_lshl_b32 s{sMB}, s{sMB}, 3")
        a(f"s_and_b32 s{sT3}, s{sT2}, 7")
        a(f"s_add_u32 s{sMB}, s{sMB}, s{sT3}")
        a(f"s_lshr_b32 s{sNB}, s{sT}, 1")
        a(f"s_lshl_b32 s{sNB}, s{sNB}, 2")
        a(f"s_lshr_b32 s{sT2}, s{sT2}, 3")
        a(f"s_add_u32 s{sNB}, s{sNB}, s{sT2}")
    else:
        a(f"s_lshr_b32 s{sMB}, s{sT}, 1")
        a(f"s_lshl_b32 s{sMB}, s{sMB}, 2")
        a(f"s_and_b32 s{sT3}, s{sT2}, 3")
        a(f"s_add_u32 s{sMB}, s{sMB}, s{sT3}")
        a(f"s_and_b32 s{sNB}, s{sT}, 1")
        a(f"s_lshl_b32 s{sNB}, s{sNB}, 3")
        a(f"s_lshr_b32 s{sT2}, s{sT2}, 2")
        a(f"s_add_u32 s{sNB}, s{sNB}, s{sT2}")
    a(f"s_cmp_lt_u32 s{sNB}, 4")
    a(f"s_movk_i32 s{sLD}, 3840"); a(f"s_cselect_b32 s{sLD}, 1280, s{sLD}")
    a(f"s_cselect_b32 s{sT}, 0, 4")
    a(f"s_sub_u32 s{sT}, s{sNB}, s{sT}")
    a(f"s_mul_i32 s{sKW}, s{sT}, 320")
    a(f"s_lshl_b32 s{sStepW}, s{sLD}, 6")
    a(f"s_mul_i32 s{sKX}, s{sMB}, {128*1280}")
    a(f"s_mov_b32 s{sKE}, 0")
    a(f"s_lshl_b32 s{sT}, s{sWv}, 4")
    a(f"v_lshrrev_b32 v{vT}, 3, v{vLane}")
    a(f"v_add_u32 v{vT}, s{sT}, v{vT}")
    a(f"v_and_b32 v{vT2}, 7, v{vLane}")
    for e in range(2):
        if e: a(f"v_add_u32 v{vT}, 8, v{vT}")
        a(f"v_bfe_u32 v{vT3}, v{vT}, 1, 3")
        a(f"v_xor_b32 v{vT3}, v{vT3}, v{vT2}")
        a(f"v_lshlrev_b32 v{vT3}, 4, v{vT3}")
        a(f"v_mul_u32_u24 v{vD+e}, 1280, v{vT}")
        a(f"v_add_u32 v{vD+e}, v{vD+e}, v{vT3}")
    a(f"s_lshl_b32 s{sM0a}, s{sWv}, 11")
    a(f"s_add_u32 s{sM0a+1}, s{sM0a}, 1024")
    a(f"s_mul_i32 s{sT}, s{sWv}, 3")
    a(f"s_lshl_b32 s{sT2}, s{sWv}, 1")
    a(f"s_add_u32 s{sT2}, s{sT2}, 4")
    a(f"s_cmp_lt_u32 s{sWv}, 4")
    a(f"s_cselect_b32 s{sT}, s{sT}, s{sT2}")
    a(f"s_lshl_b32 s{sT2}, s{sT}, 6")
    a(f"v_add_u32 v{vT}, s{sT2}, v{vLane}")
    a(f"s_lshl_b32 s{sT}, s{sT}, 10")
    for e in range(3):
        if e: a(f"v_add_u32 v{vT}, 64, v{vT}")
        a(f"v_mul_u32_u24 v{vT2}, 3277, v{vT}")
        a(f"v_lshrrev_b32 v{vT2}, 16, v{vT2}")
        a(f"v_mul_u32_u24 v{vT3}, 20, v{vT2}")
        a(f"v_sub_u32 v{vT3}, v{vT}, v{vT3}")
        a(f"v_lshlrev_b32 v{vT3}, 4, v{vT3}")
        a(f"v_mul_lo_u32 v{vD+2+e}, v{vT2}, s{sLD}")
        a(f"v_add_u32 v{vD+2+e}, v{vD+2+e}, v{vT3}")
        a(f"s_add_u32 s{sM0a+2+e}, s{sT}, {WO+1024*e}")
    a(f"s_cmp_lt_u32 s{sWv}, 4")
    a("s_cbranch_scc1 Lproj_noE")
    a(f"s_sub_u32 s{sT}, s{sWv}, 4")
    a(f"s_lshl_b32 s{sT}, s{sT}, 10")
    a(f"v_lshlrev_b32 v{vD+4}, 4, v{vLane}")
    a(f"v_add_u32 v{vD+4}, s{sT}, v{vD+4}")
    a(f"s_add_u32 s{sM0a+4}, s{sT}, {EO}")
    a(f"s_cmp_eq_u32 s{sNB}, 2")
    a(f"s_movk_i32 s{sT}, 2560"); a(f"s_cselect_b32 s{sT}, 128, s{sT}")
    a(f"v_cmp_le_u32 vcc, s{sT}, v{vD+4}")
    a(f"v_mov_b32 v{vT}, 0x40000000")
    a("s_nop 0")
    a(f"v_cndmask_b32 v{vD+4}, v{vD+4}, v{vT}, vcc")
    a.label("Lproj_noE")
    a(f"s_cmp_eq_u32 s{sNB}, 2")
    a(f"s_movk_i32 s{sStepE}, 2560"); a(f"s_cselect_b32 s{sStepE}, 128, s{sStepE}")
    if prof: a("s_memtime s[76:77]")
    a("s_waitcnt lgkmcnt(0)")
    if prof: a("s_memtime s[78:79]")
    a(f"s_mov_b32 s{SX}, s52"); a(f"s_mov_b32 s{SX+1}, s53"); a(f"s_mov_b32 s{SX+2}, {2048*1280}"); a(f"s_mov_b32 s{SX+3}, 0x00020000")
    a(f"s_cmp_lt_u32 s{sNB}, 4")
    a(f"s_cselect_b32 s{SW}, s54, s60"); a(f"s_cselect_b32 s{SW+1}, s55, s61")
    a(f"s_mov_b32 s{SW+2}, {640*3840}"); a(f"s_cselect_b32 s{SW+2}, {640*1280}, s{SW+2}"); a(f"s_mov_b32 s{SW+3}, 0x00020000")
    a(f"s_cmp_eq_u32 s{sNB}, 1")
    a(f"s_cselect_b32 s{SE}, s58, s56"); a(f"s_cselect_b32 s{SE+1}, s59, s57")
    a(f"s_mov_b32 s{SE+2}, 25600")
    a(f"s_cmp_eq_u32 s{sNB}, 2")
    a(f"s_cselect_b32 s{SE}, s62, s{SE}"); a(f"s_cselect_b32 s{SE+1}, s63, s{SE+1}")
    a(f"s_cselect_b32 s{SE+2}, 1280, s{SE+2}")
    a(f"s_cmp_gt_u32 s{sNB}, 2")
    a(f"s_cselect_b32 s{SE+2}, 0, s{SE+2}")
    a(f"s_mov_b32 s{SE+3}, 0x00020000")
    a(f"s_mov_b32 s{SWS}, s4"); a(f"s_mov_b32 s{SWS+1}, s5"); a(f"s_mov_b32 s{SWS+2}, {WS_END}"); a(f"s_mov_b32 s{SWS+3}, 0x00020000")
    a(f"s_mov_b32 s{sBufD}, 0")
    sRX=6; sRW=7
    a(f"s_and_b32 s{sRX}, s{sNB}, 7")
    a(f"s_and_b32 s{sT}, s{sMB}, 3")
    a(f"s_mul_i32 s{sT}, s{sT}, 3")
    a(f"s_add_u32 s{sRX}, s{sRX}, s{sT}")
    a(f"s_cmp_ge_u32 s{sRX}, 10")
    a(f"s_cselect_b32 s{sT}, 10, 0")
    a(f"s_sub_u32 s{sRX}, s{sRX}, s{sT}")
    if not rot: a(f"s_mov_b32 s{sRX}, 0")
    a(f"s_mov_b32 s{sRW}, s{sRX}")
    a(f"s_lshl_b32 s{sT}, s{sRX}, 7")
    a(f"s_add_u32 s{sKX}, s{sKX}, s{sT}")
    a(f"s_mul_i32 s{sT}, s{sRX}, s{sStepW}")
    a(f"s_add_u32 s{sKW}, s{sKW}, s{sT}")
    a(f"s_mul_i32 s{sKE}, s{sRX}, s{sStepE}")
    a(f"s_mul_i32 s51, s{sStepW}, -9")
    a(f"s_mul_i32 s3, s{sStepE}, -9")
    def dma(g,e):
        a(f"s_add_u32 m0, s{sM0a+e}, s{sBufD}")
        if e<2: srd,so=SX,sKX
        elif e<4 or g==0: srd,so=SW,sKW
        else: srd,so=SE,sKE
        if e==1:
            a(f"s_add_u32 s{sRX}, s{sRX}, 1")
        elif e==4:
            a(f"s_add_u32 s{sRW}, s{sRW}, 1")
        else: a("s_nop 0")
        a(f"buffer_load_dwordx4 v{vD+e}, {sr(srd,4)}, s{so} offen lds")
        if e==1:
            a(f"s_cmp_eq_u32 s{sRX}, 10")
            a(f"s_cselect_b32 s{sT}, {-9*128}, s{sC128}")
            a(f"s_cselect_b32 s{sRX}, 0, s{sRX}")
            a(f"s_add_u32 s{sKX}, s{sKX}, s{sT}")
        if e==4:
            a(f"s_cmp_eq_u32 s{sRW}, 10")
            a(f"s_cselect_b32 s{sT}, s51, s{sStepW}")
            a(f"s_cselect_b32 s{sT2}, s3, s{sStepE}")
            a(f"s_cselect_b32 s{sRW}, 0, s{sRW}")
            a(f"s_add_u32 s{sKW}, s{sKW}, s{sT}")
            if g==1: a(f"s_add_u32 s{sKE}, s{sKE}, s{sT2}")
            a(f"s_add_u32 s{sBufD}, s{sBufD}, {STG}")
            a(f"s_cmp_eq_u32 s{sBufD}, {4*STG}")
            a(f"s_cselect_b32 s{sBufD}, 0, s{sBufD}")
    if 'pfx' in var:
        a(f"s_cmp_lt_u32 s{sWv}, 3")
        a("s_cbranch_scc1 Lproj_nopfx")
        a(f"s_mov_b32 s64, s52"); a("s_mov_b32 s65, s53"); a("s_mov_b32 s67, 0x00020000")
        a("s_movk_i32 s68, 80"); a("s_mov_b32 s69, 0"); a("s_movk_i32 s70, 64")
        a(f"s_cmp_eq_u32 s{sWv}, 4")
        a("s_cselect_b32 s69, 64, s69"); a("s_cselect_b32 s70, 16, s70")
        a(f"s_cmp_eq_u32 s{sWv}, 5")
        a("s_cselect_b32 s64, s54, s64"); a("s_cselect_b32 s65, s55, s65"); a("s_cselect_b32 s68, 25, s68"); a("s_cselect_b32 s70, 25, s70")
        a(f"s_cmp_ge_u32 s{sWv}, 6")
        a("s_cselect_b32 s64, s60, s64"); a("s_cselect_b32 s65, s61, s65"); a("s_cselect_b32 s68, 75, s68")
        a(f"s_cmp_eq_u32 s{sWv}, 7")
        a("s_cselect_b32 s69, 64, s69"); a("s_cselect_b32 s70, 11, s70")
        a("s_mul_i32 s68, s68, s2")
        a("s_add_u32 s68, s68, s69")
        a("s_add_u32 s66, s68, s70")
        a("s_lshl_b32 s66, s66, 7")
        a("s_lshl_b32 s68, s68, 7")
        a(f"v_lshlrev_b32 v{vT}, 7, v{vLane}")
        a(f"buffer_load_dword v31, v{vT}, s[64:67], s68 offen")
        a.label("Lproj_nopfx")
    sC128=52
    a(f"s_movk_i32 s{sC128}, 128")
    a(f"s_cmp_lt_u32 s{sWv}, 4")
    a("s_cbranch_scc0 Lproj_pre1")
    for g in range(2):
        if g==1: a.label("Lproj_pre1")
        for e in range(5): dma(g,e)
        if g==0: a("s_branch Lproj_pre2")
    a.label("Lproj_pre2")
    a(f"s_and_b32 s{sT}, s{sWv}, 3")
    a(f"s_lshl_b32 s{sTT}, s{sMB}, 2")
    a(f"s_add_u32 s{sTT}, s{sTT}, s{sT}")
    a(f"s_lshl_b32 s{sT}, s{sT}, 12")
    a(f"v_bfe_u32 v{vT}, v{vN}, 1, 3")
    a(f"v_xor_b32 v{vT}, v{vT}, v{vH}")
    a(f"v_lshlrev_b32 v{vT}, 4, v{vT}")
    a(f"v_lshlrev_b32 v{vXb}, 7, v{vN}")
    a(f"v_add_u32 v{vXb}, v{vXb}, v{vT}")
    a(f"v_add_u32 v{vXb}, s{sT}, v{vXb}")
    a(f"v_bfe_u32 v{vT4}, v{vLane}, 2, 2")
    a(f"v_lshl_add_u32 v{vT4}, v{vH}, 3, v{vT4}")
    a(f"v_bfe_u32 v{vT5}, v{vLane}, 4, 1")
    a(f"v_and_b32 v{vT}, 3, v{vLane}")
    a(f"v_lshl_add_u32 v{vT5}, v{vT5}, 2, v{vT}")
    a(f"s_cmp_lt_u32 s{sNB}, 8")
    a(f"s_mov_b32 s{sHS}, {KV_BYTES}"); a(f"s_cselect_b32 s{sHS}, {QH_BYTES}, s{sHS}")
    a(f"s_cselect_b32 s{sScale}, {fbits(CQ)}, 1.0")
    a(f"s_lshr_b32 s{sT}, s{sTT}, 3")
    a(f"s_mul_i32 s{sT}, s{sT}, {CHUNK}")
    a(f"s_add_u32 s49, s{sT}, {WS_KV}")
    a(f"s_and_b32 s50, s{sTT}, 7")
    a(f"v_and_b32 v{vT}, 0x13, v{vN}")
    a(f"v_and_b32 v{vT2}, 4, v{vN}")
    a(f"v_lshl_or_b32 v{vT}, v{vT2}, 1, v{vT}")
    a(f"v_and_b32 v{vT2}, 8, v{vN}")
    a(f"v_lshrrev_b32 v{vT2}, 1, v{vT2}")
    a(f"v_or_b32 v27, v{vT}, v{vT2}")
    a(f"s_mov_b32 s{sBufR}, 0")
    a(f"s_mov_b32 s{sIt}, 0")
    for i in range(48): a(f"v_mov_b32 v{ACC[0]+i}, 0")
    a(f"s_cmp_lt_u32 s{sWv}, 4")
    a("s_cbranch_scc0 Lproj_g1")
    a(f"s_cmp_ge_u32 s{sNB}, 12")
    a("s_cbranch_scc1 Lproj_V0")
    a("s_branch Lproj_Q0")
    a.label("Lproj_g1")
    a(f"s_cmp_ge_u32 s{sNB}, 12")
    a("s_cbranch_scc1 Lproj_V1")
    a(f"s_cmp_eq_u32 s{sNB}, 0")
    a("s_cbranch_scc1 Lproj_Q1k")
    a(f"s_cmp_eq_u32 s{sNB}, 1")
    a("s_cbranch_scc1 Lproj_Q1v")
    a(f"s_cmp_eq_u32 s{sNB}, 2")
    a("s_cbranch_scc1 Lproj_Q1g")
    a("s_branch Lproj_Q1")

    def path(name,g,typ,extra):
        tiles=[0,1,2] if g==0 else [3,4]
        kinds=[(typ,t) for t in tiles]
        if extra: kinds.append((extra,5))
        nt=len(kinds)
        a.label(name)
        for i,(k,t) in enumerate(kinds):
            d=vWb+i
            if k=='Q' and t<4:
                a(f"v_lshrrev_b32 v{vT}, 2, v{vT5}")
                a(f"v_mul_u32_u24 v{vT}, 20, v{vT}")
                a(f"v_and_b32 v{vT2}, 1, v{vT5}")
                a(f"v_lshl_add_u32 v{vT}, v{vT2}, 1, v{vT}")
                a(f"v_bfe_u32 v{vT2}, v{vT5}, 1, 1")
                a(f"v_add3_u32 v{vT}, v{vT}, v{vT2}, {5*t}")
            elif k=='Q':
                a(f"v_mul_u32_u24 v{vT}, 5, v{vT5}")
                a(f"v_add_u32 v{vT}, 4, v{vT}")
            elif k=='V':
                a(f"v_add_u32 v{vT}, {8*t}, v{vT5}")
            elif k=='k':
                a(f"v_and_b32 v{vT2}, 1, v{vT5}")
                a(f"v_lshlrev_b32 v{vT}, 1, v{vT2}")
                a(f"v_bfe_u32 v{vT2}, v{vT5}, 1, 1")
                a(f"v_add_u32 v{vT}, v{vT}, v{vT2}")
                a(f"v_cmp_lt_u32 vcc, 3, v{vT5}")
                a("s_nop 1")
                a(f"v_cndmask_b32 v{vT}, v{vT}, 4, vcc")
            elif k=='v':
                a(f"v_min_u32 v{vT}, 4, v{vT5}")
            if k in 'QV':
                a(f"v_mul_u32_u24 v{d}, 320, v{vT4}")
                a(f"v_lshl_add_u32 v{d}, v{vT}, 3, v{d}")
                a(f"v_add_u32 v{d}, {WO}, v{d}")
            elif k in 'kv':
                a(f"v_mul_u32_u24 v{d}, 40, v{vT4}")
                a(f"v_lshl_add_u32 v{d}, v{vT}, 3, v{d}")
                a(f"v_add_u32 v{d}, {EO}, v{d}")
            else:
                a(f"v_lshlrev_b32 v{d}, 4, v{vH}")
                a(f"v_add_u32 v{d}, {EO}, v{d}")
        def addr_update():
            a(f"v_add_u32 v{vXa}, s{sBufR}, v{vXb}")
            for i in range(nt): a(f"v_add_u32 v{vWa+i}, s{sBufR}, v{vWb+i}")
            for ks in range(1,4): a(f"v_xor_b32 v{vXa+ks}, {32*ks}, v{vXa}")
            a(f"s_add_u32 s{sBufR}, s{sBufR}, {STG}")
            a(f"s_cmp_eq_u32 s{sBufR}, {4*STG}")
            a(f"s_cselect_b32 s{sBufR}, 0, s{sBufR}")
        def nreads():
            return 1+sum(1 if k=='g' else 2 for k,t in kinds)
        def reads(ks,f):
            r=[f"ds_read_b128 {vr(FX[f],4)}, v{vXa+ks}"]
            for i,(k,t) in enumerate(kinds):
                if k in 'QV':
                    r.append(f"ds_read_b64_tr_b16 {vr(FW[f][i],2)}, v{vWa+i} offset:{5120*ks}")
                    r.append(f"ds_read_b64_tr_b16 {vr(FW[f][i]+2,2)}, v{vWa+i} offset:{5120*ks+1280}")
                elif k in 'kv':
                    r.append(f"ds_read_b64_tr_b16 {vr(FW[f][i],2)}, v{vWa+i} offset:{640*ks}")
                    r.append(f"ds_read_b64_tr_b16 {vr(FW[f][i]+2,2)}, v{vWa+i} offset:{640*ks+160}")
                else:
                    r.append(f"ds_read_b128 {vr(FW[f][i],4)}, v{vWa+i} offset:{32*ks}")
            return r
        def mfmas(f):
            r=[]
            for i,(k,t) in enumerate(kinds):
                if k in 'Vv': A_,B_=FX[f],FW[f][i]
                else: A_,B_=FW[f][i],FX[f]
                r.append(f"v_mfma_f32_32x32x16_bf16 {vr(ACC[i],16)}, {vr(A_,4)}, {vr(B_,4)}, {vr(ACC[i],16)}")
            return r
        def cap(fn,*args):
            n=len(a.l); fn(*args); r=[x.strip() for x in a.l[n:]]; del a.l[n:]; return r
        def inter(ms,fill):
            per=-(-len(fill)//len(ms))
            for i,m in enumerate(ms):
                a(m)
                for x in fill[i*per:(i+1)*per]: a(x)
        nr=nreads()
        addr_update()
        for e in range(5): dma(g,e)
        dma(g,0); dma(g,1)
        if prof: a("s_memtime s[80:81]")
        a("s_waitcnt vmcnt(7)")
        a("s_barrier")
        if prof: a("s_memtime s[88:89]"); a("s_waitcnt lgkmcnt(0)")
        for x in reads(0,0)+reads(1,1): a(x)
        a.label(name+"_loop")
        a(f"s_waitcnt lgkmcnt({nr})")
        inter(mfmas(0), reads(2,2)+cap(dma,g,2))
        a(f"s_waitcnt lgkmcnt({nr})")
        inter(mfmas(1), reads(3,3)+cap(dma,g,3)+cap(dma,g,4))
        a(f"s_waitcnt lgkmcnt({nr})")
        m2=mfmas(2)
        a(m2[0])
        a(f"s_cmp_lt_u32 s{sIt}, 7")
        a(f"s_cselect_b32 s{SX+2}, s{SX+2}, 0")
        a(f"s_cselect_b32 s{SW+2}, s{SW+2}, 0")
        a(f"s_cselect_b32 s{SE+2}, s{SE+2}, 0")
        addr_update()
        a("s_waitcnt vmcnt(5) lgkmcnt(0)")
        a("s_barrier")
        inter(m2[1:], reads(0,0)+cap(dma,g,0))
        inter(mfmas(3), reads(1,1)+cap(dma,g,1))
        a(f"s_add_u32 s{sIt}, s{sIt}, 1")
        a(f"s_cmp_lt_u32 s{sIt}, 10")
        a(f"s_cbranch_scc1 {name}_loop")
        a("s_nop 7")
        if prof: a("s_memtime s[90:91]")
        a("s_waitcnt lgkmcnt(0)")
        TMP=FX[0]
        if typ=='Q':
            a(f"s_cmp_lt_u32 s{sNB}, 8")
            a(f"s_cselect_b64 vcc, -1, 0")
            a(f"v_cndmask_b32 v{vT}, v27, v{vN}, vcc")
            a(f"v_lshlrev_b32 v{vOm}, 9, v{vH}")
            a(f"v_lshl_add_u32 v{vOm}, v{vT}, 4, v{vOm}")
            a(f"v_mul_lo_u32 v{vOr}, v{vH}, s{sHS}")
            a(f"v_lshl_add_u32 v{vOr}, v{vT}, 3, v{vOr}")
            a(f"s_mul_i32 s{sT}, s{sNB}, {8*QH_BYTES}")
            a(f"s_lshl_b32 s{sT2}, s{sTT}, 10")
            a(f"s_add_u32 s{sOm}, s{sT}, s{sT2}")
            a(f"s_lshl_b32 s{sT2}, s{sTT}, 8")
            a(f"s_add_u32 s{sOr}, s{sT}, s{sT2}")
            a(f"s_add_u32 s{sOr}, s{sOr}, 65536")
            a(f"s_cmp_lt_u32 s{sNB}, 8")
            a(f"s_cbranch_scc1 {name}_isq")
            a(f"s_sub_u32 s{sT}, s{sNB}, 8")
            a(f"s_mul_i32 s{sT}, s{sT}, {8*KV_BYTES}")
            a(f"s_add_u32 s{sT}, s{sT}, s49")
            a(f"s_lshl_b32 s{sT2}, s50, 10")
            a(f"s_add_u32 s{sOm}, s{sT}, s{sT2}")
            a(f"s_lshl_b32 s{sT2}, s50, 8")
            a(f"s_add_u32 s{sOr}, s{sT}, s{sT2}")
            a(f"s_add_u32 s{sOr}, s{sOr}, 8192")
            a.label(name+"_isq")
            a(f"v_mov_b32 v{vT3}, s{sScale}")
            a("s_nop 4")
        else:
            a("s_nop 15")
        tp=TMP
        for i,(k,t) in enumerate(kinds):
            acc=ACC[i]
            if k=='Q':
                for r in range(16): a(f"v_mul_f32 v{acc+r}, v{acc+r}, v{vT3}")
            if k!='g':
                for r in range(8): a(f"v_cvt_pk_bf16_f32 v{tp+r}, v{acc+2*r}, v{acc+2*r+1}")
            if k=='Q' and t<4:
                for hh in range(2):
                    a(f"s_mul_i32 s{sT}, s{sHS}, {t+4*hh}")
                    a(f"s_add_u32 s{sT}, s{sT}, s{sOm}")
                    a(f"buffer_store_dwordx4 {vr(tp+4*hh,4)}, v{vOm}, {sr(SWS,4)}, s{sT} offen")
            elif k=='Q':
                for rg in range(4):
                    a(f"s_mul_i32 s{sT}, s{sHS}, {2*rg}")
                    a(f"s_add_u32 s{sT}, s{sT}, s{sOr}")
                    a(f"buffer_store_dwordx2 {vr(tp+2*rg,2)}, v{vOr}, {sr(SWS,4)}, s{sT} offen")
            elif k in 'Vv':
                if k=='V':
                    a(f"v_add_u32 v{vT}, {32*t}, v{vN}")
                    a(f"v_mul_u32_u24 v{vT2}, 205, v{vT}")
                    a(f"v_lshrrev_b32 v{vT2}, 12, v{vT2}")
                    a(f"v_mul_u32_u24 v{vT4}, 20, v{vT2}")
                    a(f"v_sub_u32 v{vT}, v{vT}, v{vT4}")
                else:
                    a(f"v_mov_b32 v{vT}, v{vN}")
                a(f"v_and_b32 v{vT4}, 0x13, v{vT}")
                a(f"v_and_b32 v{vT5}, 4, v{vT}")
                a(f"v_lshl_or_b32 v{vT4}, v{vT5}, 1, v{vT4}")
                a(f"v_and_b32 v{vT5}, 8, v{vT}")
                a(f"v_lshrrev_b32 v{vT5}, 1, v{vT5}")
                a(f"v_or_b32 v{vT4}, v{vT4}, v{vT5}")
                a(f"v_mul_u32_u24 v{vT5}, 320, v{vH}")
                a(f"v_lshl_add_u32 v{vT4}, v{vT4}, 4, v{vT5}")
                if k=='V':
                    a(f"s_mov_b32 s{sT}, {KV_BYTES}")
                    a(f"v_mul_lo_u32 v{vT2}, v{vT2}, s{sT}")
                    a(f"v_add_u32 v{vT4}, v{vT4}, v{vT2}")
                    a(f"s_sub_u32 s{sT}, s{sNB}, 12")
                    a(f"s_mul_i32 s{sT}, s{sT}, {8*KV_BYTES}")
                else:
                    a(f"s_mov_b32 s{sT}, {32*KV_BYTES}")
                    a(f"v_cmp_gt_u32 vcc, 20, v{vN}")
                    a("s_nop 1")
                    a("s_and_b64 exec, exec, vcc")
                a(f"s_add_u32 s{sT}, s{sT}, s49")
                a(f"s_mul_i32 s{sT2}, s50, 1280")
                a(f"s_add_u32 s{sT}, s{sT}, s{sT2}")
                a(f"s_add_u32 s{sT}, s{sT}, 10240")
                a(f"buffer_store_dwordx4 {vr(tp,4)}, v{vT4}, {sr(SWS,4)}, s{sT} offen")
                a(f"buffer_store_dwordx4 {vr(tp+4,4)}, v{vT4}, {sr(SWS,4)}, s{sT} offen offset:640")
            elif k=='k':
                a(f"v_lshlrev_b32 v{vT}, 9, v{vH}")
                a(f"v_lshl_add_u32 v{vT}, v27, 4, v{vT}")
                a(f"v_lshlrev_b32 v{vT2}, 3, v27")
                a(f"s_add_u32 s{sT}, s49, {32*KV_BYTES}")
                a(f"s_lshl_b32 s{sT2}, s50, 10")
                a(f"s_add_u32 s{sT2}, s{sT2}, s{sT}")
                a(f"buffer_store_dwordx4 {vr(tp,4)}, v{vT}, {sr(SWS,4)}, s{sT2} offen")
                a(f"s_lshl_b32 s{sT2}, s50, 8")
                a(f"s_add_u32 s{sT2}, s{sT2}, s{sT}")
                a(f"s_add_u32 s{sT2}, s{sT2}, 8192")
                a("s_mov_b32 exec_hi, 0")
                a(f"buffer_store_dwordx2 {vr(tp+4,2)}, v{vT2}, {sr(SWS,4)}, s{sT2} offen")
            elif k=='g':
                a(f"v_cvt_pk_bf16_f32 v{vT}, v{acc}, v{acc}")
                a(f"v_lshlrev_b32 v{vT}, 16, v{vT}")
                a(f"v_mul_f32 v{vT}, 0xbfb8aa3b, v{vT}")
                a(f"v_exp_f32 v{vT}, v{vT}")
                a("s_nop 0")
                a(f"v_add_f32 v{vT}, 1.0, v{vT}")
                a(f"v_rcp_f32 v{vT}, v{vT}")
                a("s_nop 0")
                a(f"v_cvt_pk_bf16_f32 v{vT}, v{vT}, v{vT}")
                a(f"v_lshlrev_b32 v{vT}, 16, v{vT}")
                a(f"v_sub_f32 v{vT2}, 1.0, v{vT}")
                a(f"v_cvt_pk_bf16_f32 v{vT2}, v{vT2}, v{vT2}")
                a(f"v_lshlrev_b32 v{vT2}, 16, v{vT2}")
                a(f"v_lshlrev_b32 v{vT4}, 2, v{vN}")
                a(f"s_lshl_b32 s{sT}, s{sTT}, 7")
                a(f"s_add_u32 s{sT}, s{sT}, {WS_G}")
                a(f"s_add_u32 s{sT2}, s{sT}, 8192")
                a("s_mov_b32 exec_hi, 0")
                a(f"buffer_store_dword v{vT}, v{vT4}, {sr(SWS,4)}, s{sT} offen")
                a(f"buffer_store_dword v{vT2}, v{vT4}, {sr(SWS,4)}, s{sT2} offen")
            tp+=8
        if prof: prof_end(a,84,86,72,SWS,sWv,8,0x40000,mids=(76,78,80,88,90))
        a("s_endpgm")
    path("Lproj_Q0",0,'Q',None)
    path("Lproj_V0",0,'V',None)
    path("Lproj_Q1",1,'Q',None)
    path("Lproj_V1",1,'V',None)
    path("Lproj_Q1k",1,'Q','k')
    path("Lproj_Q1v",1,'Q','v')
    path("Lproj_Q1g",1,'Q','g')
    a.label("Lproj_end")
    a("s_endpgm")
    txt=a.text()
    L=txt.split("\n")
    if 'nomf' in var: L=[x for x in L if 'v_mfma' not in x]
    if 'nord' in var: L=[x for x in L if 'ds_read' not in x]
    if 'nodma' in var: L=[x for x in L if ' lds' not in x]
    txt="\n".join(L)
    return txt, NV, 256, 512, 4*STG
```

```python
from gen_common import *
import struct
CQ=(20**-0.5)*1.4426950408889634
def fbits(x): return struct.unpack("<I",struct.pack("<f",x))[0]

def gen_proj(prof=False, rot=1, var=''):
    a=A()
    STG=40960; XO=0; WO=16384; EO=36864
    SX=8; SW=12; SE=16; SWS=20
    sMB=24; sNB=25; sWv=26; sLD=27; sKX=28; sKW=29; sKE=30; sStepW=31; sStepE=32; sBufD=33; sBufR=34; sIt=35
    sTT=36; sHS=37; sOm=38; sOr=39; sScale=40; sM0a=41
    sT=46; sT2=47; sT3=48
    vLane=1; vD=2
    vXb=7; vXa=8
    vWb=12
    vWa=15
    vT=18; vT2=19; vT3=20; vN=21; vH=22; vOm=23; vOr=24; vT4=25; vT5=26
    ACC=[32,48,64]
    FX=[80,84,88,92]
    FW=[[96+12*f+4*i for i in range(3)] for f in range(4)]
    NV=144
    a("s_cmp_ge_u32 s2, 256")
    a("s_cbranch_scc1 Lproj_end")
    a("s_load_dwordx4 s[52:55], s[0:1], 0")
    a("s_load_dwordx4 s[56:59], s[0:1], 16")
    a("s_load_dwordx2 s[60:61], s[0:1], 48")
    a("s_load_dwordx2 s[62:63], s[0:1], 64")
    a("s_load_dwordx2 s[4:5], s[0:1], 88")
    if 'tlb' in var:
        a("s_load_dwordx2 s[68:69], s[0:1], 32")
        a("s_load_dwordx2 s[70:71], s[0:1], 56")
        a("s_load_dwordx2 s[72:73], s[0:1], 72")
    if prof: prof_start(a,84,86)
    a(f"v_and_b32 v{vLane}, 63, v0")
    a(f"v_lshrrev_b32 v{vT}, 6, v0")
    a(f"v_and_b32 v{vN}, 31, v0")
    a(f"v_readfirstlane_b32 s{sWv}, v{vT}")
    a(f"v_lshrrev_b32 v{vH}, 5, v{vLane}")
    a(f"s_and_b32 s{sT}, s2, 7")
    a(f"s_lshr_b32 s{sT2}, s2, 3")
    if 'map84' in var:
        a(f"s_and_b32 s{sMB}, s{sT}, 1")
        a(f"s_lshl_b32 s{sMB}, s{sMB}, 3")
        a(f"s_and_b32 s{sT3}, s{sT2}, 7")
        a(f"s_add_u32 s{sMB}, s{sMB}, s{sT3}")
        a(f"s_lshr_b32 s{sNB}, s{sT}, 1")
        a(f"s_lshl_b32 s{sNB}, s{sNB}, 2")
        a(f"s_lshr_b32 s{sT2}, s{sT2}, 3")
        a(f"s_add_u32 s{sNB}, s{sNB}, s{sT2}")
    else:
        a(f"s_lshr_b32 s{sMB}, s{sT}, 1")
        a(f"s_lshl_b32 s{sMB}, s{sMB}, 2")
        a(f"s_and_b32 s{sT3}, s{sT2}, 3")
        a(f"s_add_u32 s{sMB}, s{sMB}, s{sT3}")
        a(f"s_and_b32 s{sNB}, s{sT}, 1")
        a(f"s_lshl_b32 s{sNB}, s{sNB}, 3")
        a(f"s_lshr_b32 s{sT2}, s{sT2}, 2")
        a(f"s_add_u32 s{sNB}, s{sNB}, s{sT2}")
    a(f"s_cmp_lt_u32 s{sNB}, 4")
    a(f"s_movk_i32 s{sLD}, 3840"); a(f"s_cselect_b32 s{sLD}, 1280, s{sLD}")
    a(f"s_cselect_b32 s{sT}, 0, 4")
    a(f"s_sub_u32 s{sT}, s{sNB}, s{sT}")
    a(f"s_mul_i32 s{sKW}, s{sT}, 320")
    a(f"s_lshl_b32 s{sStepW}, s{sLD}, 6")
    a(f"s_mul_i32 s{sKX}, s{sMB}, {128*1280}")
    a(f"s_mov_b32 s{sKE}, 0")
    a(f"s_lshl_b32 s{sT}, s{sWv}, 4")
    a(f"v_lshrrev_b32 v{vT}, 3, v{vLane}")
    a(f"v_add_u32 v{vT}, s{sT}, v{vT}")
    a(f"v_and_b32 v{vT2}, 7, v{vLane}")
    for e in range(2):
        if e: a(f"v_add_u32 v{vT}, 8, v{vT}")
        a(f"v_bfe_u32 v{vT3}, v{vT}, 1, 3")
        a(f"v_xor_b32 v{vT3}, v{vT3}, v{vT2}")
        a(f"v_lshlrev_b32 v{vT3}, 4, v{vT3}")
        a(f"v_mul_u32_u24 v{vD+e}, 1280, v{vT}")
        a(f"v_add_u32 v{vD+e}, v{vD+e}, v{vT3}")
    a(f"s_lshl_b32 s{sM0a}, s{sWv}, 11")
    a(f"s_add_u32 s{sM0a+1}, s{sM0a}, 1024")
    a(f"s_mul_i32 s{sT}, s{sWv}, 3")
    a(f"s_lshl_b32 s{sT2}, s{sWv}, 1")
    a(f"s_add_u32 s{sT2}, s{sT2}, 4")
    a(f"s_cmp_lt_u32 s{sWv}, 4")
    a(f"s_cselect_b32 s{sT}, s{sT}, s{sT2}")
    a(f"s_lshl_b32 s{sT2}, s{sT}, 6")
    a(f"v_add_u32 v{vT}, s{sT2}, v{vLane}")
    a(f"s_lshl_b32 s{sT}, s{sT}, 10")
    for e in range(3):
        if e: a(f"v_add_u32 v{vT}, 64, v{vT}")
        a(f"v_mul_u32_u24 v{vT2}, 3277, v{vT}")
        a(f"v_lshrrev_b32 v{vT2}, 16, v{vT2}")
        a(f"v_mul_u32_u24 v{vT3}, 20, v{vT2}")
        a(f"v_sub_u32 v{vT3}, v{vT}, v{vT3}")
        a(f"v_lshlrev_b32 v{vT3}, 4, v{vT3}")
        a(f"v_mul_lo_u32 v{vD+2+e}, v{vT2}, s{sLD}")
        a(f"v_add_u32 v{vD+2+e}, v{vD+2+e}, v{vT3}")
        a(f"s_add_u32 s{sM0a+2+e}, s{sT}, {WO+1024*e}")
    a(f"s_cmp_lt_u32 s{sWv}, 4")
    a("s_cbranch_scc1 Lproj_noE")
    a(f"s_sub_u32 s{sT}, s{sWv}, 4")
    a(f"s_lshl_b32 s{sT}, s{sT}, 10")
    a(f"v_lshlrev_b32 v{vD+4}, 4, v{vLane}")
    a(f"v_add_u32 v{vD+4}, s{sT}, v{vD+4}")
    a(f"s_add_u32 s{sM0a+4}, s{sT}, {EO}")
    a(f"s_cmp_eq_u32 s{sNB}, 2")
    a(f"s_movk_i32 s{sT}, 2560"); a(f"s_cselect_b32 s{sT}, 128, s{sT}")
    a(f"v_cmp_le_u32 vcc, s{sT}, v{vD+4}")
    a(f"v_mov_b32 v{vT}, 0x40000000")
    a("s_nop 0")
    a(f"v_cndmask_b32 v{vD+4}, v{vD+4}, v{vT}, vcc")
    a.label("Lproj_noE")
    a(f"s_cmp_eq_u32 s{sNB}, 2")
    a(f"s_movk_i32 s{sStepE}, 2560"); a(f"s_cselect_b32 s{sStepE}, 128, s{sStepE}")
    if prof: a("s_memtime s[76:77]")
    a("s_waitcnt lgkmcnt(0)")
    if prof: a("s_memtime s[78:79]")
    a(f"s_mov_b32 s{SX}, s52"); a(f"s_mov_b32 s{SX+1}, s53"); a(f"s_mov_b32 s{SX+2}, {2048*1280}"); a(f"s_mov_b32 s{SX+3}, 0x00020000")
    a(f"s_cmp_lt_u32 s{sNB}, 4")
    a(f"s_cselect_b32 s{SW}, s54, s60"); a(f"s_cselect_b32 s{SW+1}, s55, s61")
    a(f"s_mov_b32 s{SW+2}, {640*3840}"); a(f"s_cselect_b32 s{SW+2}, {640*1280}, s{SW+2}"); a(f"s_mov_b32 s{SW+3}, 0x00020000")
    a(f"s_cmp_eq_u32 s{sNB}, 1")
    a(f"s_cselect_b32 s{SE}, s58, s56"); a(f"s_cselect_b32 s{SE+1}, s59, s57")
    a(f"s_mov_b32 s{SE+2}, 25600")
    a(f"s_cmp_eq_u32 s{sNB}, 2")
    a(f"s_cselect_b32 s{SE}, s62, s{SE}"); a(f"s_cselect_b32 s{SE+1}, s63, s{SE+1}")
    a(f"s_cselect_b32 s{SE+2}, 1280, s{SE+2}")
    a(f"s_cmp_gt_u32 s{sNB}, 2")
    a(f"s_cselect_b32 s{SE+2}, 0, s{SE+2}")
    a(f"s_mov_b32 s{SE+3}, 0x00020000")
    a(f"s_mov_b32 s{SWS}, s4"); a(f"s_mov_b32 s{SWS+1}, s5"); a(f"s_mov_b32 s{SWS+2}, {WS_END}"); a(f"s_mov_b32 s{SWS+3}, 0x00020000")
    a(f"s_mov_b32 s{sBufD}, 0")
    sRX=6; sRW=7
    a(f"s_and_b32 s{sRX}, s{sNB}, 7")
    a(f"s_and_b32 s{sT}, s{sMB}, 3")
    a(f"s_mul_i32 s{sT}, s{sT}, 3")
    a(f"s_add_u32 s{sRX}, s{sRX}, s{sT}")
    a(f"s_cmp_ge_u32 s{sRX}, 10")
    a(f"s_cselect_b32 s{sT}, 10, 0")
    a(f"s_sub_u32 s{sRX}, s{sRX}, s{sT}")
    if not rot: a(f"s_mov_b32 s{sRX}, 0")
    a(f"s_mov_b32 s{sRW}, s{sRX}")
    a(f"s_lshl_b32 s{sT}, s{sRX}, 7")
    a(f"s_add_u32 s{sKX}, s{sKX}, s{sT}")
    a(f"s_mul_i32 s{sT}, s{sRX}, s{sStepW}")
    a(f"s_add_u32 s{sKW}, s{sKW}, s{sT}")
    a(f"s_mul_i32 s{sKE}, s{sRX}, s{sStepE}")
    a(f"s_mul_i32 s51, s{sStepW}, -9")
    a(f"s_mul_i32 s3, s{sStepE}, -9")
    def dma(g,e):
        a(f"s_add_u32 m0, s{sM0a+e}, s{sBufD}")
        if e<2: srd,so=SX,sKX
        elif e<4 or g==0: srd,so=SW,sKW
        else: srd,so=SE,sKE
        if e==1:
            a(f"s_add_u32 s{sRX}, s{sRX}, 1")
        elif e==4:
            a(f"s_add_u32 s{sRW}, s{sRW}, 1")
        else: a("s_nop 0")
        a(f"buffer_load_dwordx4 v{vD+e}, {sr(srd,4)}, s{so} offen lds")
        if e==1:
            a(f"s_cmp_eq_u32 s{sRX}, 10")
            a(f"s_cselect_b32 s{sT}, {-9*128}, s{sC128}")
            a(f"s_cselect_b32 s{sRX}, 0, s{sRX}")
            a(f"s_add_u32 s{sKX}, s{sKX}, s{sT}")
        if e==4:
            a(f"s_cmp_eq_u32 s{sRW}, 10")
            a(f"s_cselect_b32 s{sT}, s51, s{sStepW}")
            a(f"s_cselect_b32 s{sT2}, s3, s{sStepE}")
            a(f"s_cselect_b32 s{sRW}, 0, s{sRW}")
            a(f"s_add_u32 s{sKW}, s{sKW}, s{sT}")
            if g==1: a(f"s_add_u32 s{sKE}, s{sKE}, s{sT2}")
            a(f"s_add_u32 s{sBufD}, s{sBufD}, {STG}")
            a(f"s_cmp_eq_u32 s{sBufD}, {4*STG}")
            a(f"s_cselect_b32 s{sBufD}, 0, s{sBufD}")
    if 'pfx' in var:
        a("s_mov_b32 s67, 0x00020000")
        a(f"s_cmp_lt_u32 s{sWv}, 3")
        a("s_cbranch_scc1 Lproj_tlb")
        a(f"s_mov_b32 s64, s52"); a("s_mov_b32 s65, s53")
        a("s_movk_i32 s68, 80"); a("s_mov_b32 s69, 0"); a("s_movk_i32 s70, 64")
        a(f"s_cmp_eq_u32 s{sWv}, 4")
        a("s_cselect_b32 s69, 64, s69"); a("s_cselect_b32 s70, 16, s70")
        a(f"s_cmp_eq_u32 s{sWv}, 5")
        a("s_cselect_b32 s64, s54, s64"); a("s_cselect_b32 s65, s55, s65"); a("s_cselect_b32 s68, 25, s68"); a("s_cselect_b32 s70, 25, s70")
        a(f"s_cmp_ge_u32 s{sWv}, 6")
        a("s_cselect_b32 s64, s60, s64"); a("s_cselect_b32 s65, s61, s65"); a("s_cselect_b32 s68, 75, s68")
        a(f"s_cmp_eq_u32 s{sWv}, 7")
        a("s_cselect_b32 s69, 64, s69"); a("s_cselect_b32 s70, 11, s70")
        a("s_mul_i32 s68, s68, s2")
        a("s_add_u32 s68, s68, s69")
        a("s_add_u32 s66, s68, s70")
        a("s_lshl_b32 s66, s66, 7")
        a("s_lshl_b32 s68, s68, 7")
        a(f"v_lshlrev_b32 v{vT}, 7, v{vLane}")
        a(f"buffer_load_dword v31, v{vT}, s[64:67], s68 offen")
        a("s_branch Lproj_nopfx")
        a.label("Lproj_tlb")
        if 'tlb' in var:
            a(f"v_lshlrev_b32 v{vT}, 19, v{vLane}")
            a(f"s_cmp_eq_u32 s{sWv}, 0")
            a("s_cbranch_scc0 Lproj_tlb1")
            a(f"buffer_load_dword v31, v{vT}, {sr(SWS,4)}, 0 offen")
            a("s_branch Lproj_nopfx")
            a.label("Lproj_tlb1")
            a(f"s_cmp_eq_u32 s{sWv}, 1")
            a("s_cbranch_scc0 Lproj_tlb2")
            a("s_mov_b32 s64, s72"); a("s_mov_b32 s65, s73"); a(f"s_mov_b32 s66, {2048*1280}")
            a(f"buffer_load_dword v31, v{vT}, s[64:67], 0 offen")
            a("s_branch Lproj_nopfx")
            a.label("Lproj_tlb2")
            a("s_mov_b32 s64, s68"); a("s_mov_b32 s65, s69"); a(f"s_mov_b32 s66, {640*1280}")
            a(f"buffer_load_dword v31, v{vT}, s[64:67], 0 offen")
            a("s_mov_b32 s64, s70"); a("s_mov_b32 s65, s71")
            a(f"buffer_load_dword v30, v{vT}, s[64:67], 0 offen")
        a.label("Lproj_nopfx")
    sC128=52
    a(f"s_movk_i32 s{sC128}, 128")
    a(f"s_cmp_lt_u32 s{sWv}, 4")
    a("s_cbranch_scc0 Lproj_pre1")
    for g in range(2):
        if g==1: a.label("Lproj_pre1")
        for e in range(5): dma(g,e)
        if g==0: a("s_branch Lproj_pre2")
    a.label("Lproj_pre2")
    a(f"s_and_b32 s{sT}, s{sWv}, 3")
    a(f"s_lshl_b32 s{sTT}, s{sMB}, 2")
    a(f"s_add_u32 s{sTT}, s{sTT}, s{sT}")
    a(f"s_lshl_b32 s{sT}, s{sT}, 12")
    a(f"v_bfe_u32 v{vT}, v{vN}, 1, 3")
    a(f"v_xor_b32 v{vT}, v{vT}, v{vH}")
    a(f"v_lshlrev_b32 v{vT}, 4, v{vT}")
    a(f"v_lshlrev_b32 v{vXb}, 7, v{vN}")
    a(f"v_add_u32 v{vXb}, v{vXb}, v{vT}")
    a(f"v_add_u32 v{vXb}, s{sT}, v{vXb}")
    a(f"v_bfe_u32 v{vT4}, v{vLane}, 2, 2")
    a(f"v_lshl_add_u32 v{vT4}, v{vH}, 3, v{vT4}")
    a(f"v_bfe_u32 v{vT5}, v{vLane}, 4, 1")
    a(f"v_and_b32 v{vT}, 3, v{vLane}")
    a(f"v_lshl_add_u32 v{vT5}, v{vT5}, 2, v{vT}")
    a(f"s_cmp_lt_u32 s{sNB}, 8")
    a(f"s_mov_b32 s{sHS}, {KV_BYTES}"); a(f"s_cselect_b32 s{sHS}, {QH_BYTES}, s{sHS}")
    a(f"s_cselect_b32 s{sScale}, {fbits(CQ)}, 1.0")
    a(f"s_lshr_b32 s{sT}, s{sTT}, 3")
    a(f"s_mul_i32 s{sT}, s{sT}, {CHUNK}")
    a(f"s_add_u32 s49, s{sT}, {WS_KV}")
    a(f"s_and_b32 s50, s{sTT}, 7")
    a(f"v_and_b32 v{vT}, 0x13, v{vN}")
    a(f"v_and_b32 v{vT2}, 4, v{vN}")
    a(f"v_lshl_or_b32 v{vT}, v{vT2}, 1, v{vT}")
    a(f"v_and_b32 v{vT2}, 8, v{vN}")
    a(f"v_lshrrev_b32 v{vT2}, 1, v{vT2}")
    a(f"v_or_b32 v27, v{vT}, v{vT2}")
    a(f"s_mov_b32 s{sBufR}, 0")
    a(f"s_mov_b32 s{sIt}, 0")
    for i in range(48): a(f"v_mov_b32 v{ACC[0]+i}, 0")
    a(f"s_cmp_lt_u32 s{sWv}, 4")
    a("s_cbranch_scc0 Lproj_g1")
    a(f"s_cmp_ge_u32 s{sNB}, 12")
    a("s_cbranch_scc1 Lproj_V0")
    a("s_branch Lproj_Q0")
    a.label("Lproj_g1")
    a(f"s_cmp_ge_u32 s{sNB}, 12")
    a("s_cbranch_scc1 Lproj_V1")
    a(f"s_cmp_eq_u32 s{sNB}, 0")
    a("s_cbranch_scc1 Lproj_Q1k")
    a(f"s_cmp_eq_u32 s{sNB}, 1")
    a("s_cbranch_scc1 Lproj_Q1v")
    a(f"s_cmp_eq_u32 s{sNB}, 2")
    a("s_cbranch_scc1 Lproj_Q1g")
    a("s_branch Lproj_Q1")

    def path(name,g,typ,extra):
        tiles=[0,1,2] if g==0 else [3,4]
        kinds=[(typ,t) for t in tiles]
        if extra: kinds.append((extra,5))
        nt=len(kinds)
        a.label(name)
        for i,(k,t) in enumerate(kinds):
            d=vWb+i
            if k=='Q' and t<4:
                a(f"v_lshrrev_b32 v{vT}, 2, v{vT5}")
                a(f"v_mul_u32_u24 v{vT}, 20, v{vT}")
                a(f"v_and_b32 v{vT2}, 1, v{vT5}")
                a(f"v_lshl_add_u32 v{vT}, v{vT2}, 1, v{vT}")
                a(f"v_bfe_u32 v{vT2}, v{vT5}, 1, 1")
                a(f"v_add3_u32 v{vT}, v{vT}, v{vT2}, {5*t}")
            elif k=='Q':
                a(f"v_mul_u32_u24 v{vT}, 5, v{vT5}")
                a(f"v_add_u32 v{vT}, 4, v{vT}")
            elif k=='V':
                a(f"v_add_u32 v{vT}, {8*t}, v{vT5}")
            elif k=='k':
                a(f"v_and_b32 v{vT2}, 1, v{vT5}")
                a(f"v_lshlrev_b32 v{vT}, 1, v{vT2}")
                a(f"v_bfe_u32 v{vT2}, v{vT5}, 1, 1")
                a(f"v_add_u32 v{vT}, v{vT}, v{vT2}")
                a(f"v_cmp_lt_u32 vcc, 3, v{vT5}")
                a("s_nop 1")
                a(f"v_cndmask_b32 v{vT}, v{vT}, 4, vcc")
            elif k=='v':
                a(f"v_min_u32 v{vT}, 4, v{vT5}")
            if k in 'QV':
                a(f"v_mul_u32_u24 v{d}, 320, v{vT4}")
                a(f"v_lshl_add_u32 v{d}, v{vT}, 3, v{d}")
                a(f"v_add_u32 v{d}, {WO}, v{d}")
            elif k in 'kv':
                a(f"v_mul_u32_u24 v{d}, 40, v{vT4}")
                a(f"v_lshl_add_u32 v{d}, v{vT}, 3, v{d}")
                a(f"v_add_u32 v{d}, {EO}, v{d}")
            else:
                a(f"v_lshlrev_b32 v{d}, 4, v{vH}")
                a(f"v_add_u32 v{d}, {EO}, v{d}")
        def addr_update():
            a(f"v_add_u32 v{vXa}, s{sBufR}, v{vXb}")
            for i in range(nt): a(f"v_add_u32 v{vWa+i}, s{sBufR}, v{vWb+i}")
            for ks in range(1,4): a(f"v_xor_b32 v{vXa+ks}, {32*ks}, v{vXa}")
            a(f"s_add_u32 s{sBufR}, s{sBufR}, {STG}")
            a(f"s_cmp_eq_u32 s{sBufR}, {4*STG}")
            a(f"s_cselect_b32 s{sBufR}, 0, s{sBufR}")
        def nreads():
            return 1+sum(1 if k=='g' else 2 for k,t in kinds)
        def reads(ks,f):
            r=[f"ds_read_b128 {vr(FX[f],4)}, v{vXa+ks}"]
            for i,(k,t) in enumerate(kinds):
                if k in 'QV':
                    r.append(f"ds_read_b64_tr_b16 {vr(FW[f][i],2)}, v{vWa+i} offset:{5120*ks}")
                    r.append(f"ds_read_b64_tr_b16 {vr(FW[f][i]+2,2)}, v{vWa+i} offset:{5120*ks+1280}")
                elif k in 'kv':
                    r.append(f"ds_read_b64_tr_b16 {vr(FW[f][i],2)}, v{vWa+i} offset:{640*ks}")
                    r.append(f"ds_read_b64_tr_b16 {vr(FW[f][i]+2,2)}, v{vWa+i} offset:{640*ks+160}")
                else:
                    r.append(f"ds_read_b128 {vr(FW[f][i],4)}, v{vWa+i} offset:{32*ks}")
            return r
        def mfmas(f):
            r=[]
            for i,(k,t) in enumerate(kinds):
                if k in 'Vv': A_,B_=FX[f],FW[f][i]
                else: A_,B_=FW[f][i],FX[f]
                r.append(f"v_mfma_f32_32x32x16_bf16 {vr(ACC[i],16)}, {vr(A_,4)}, {vr(B_,4)}, {vr(ACC[i],16)}")
            return r
        def cap(fn,*args):
            n=len(a.l); fn(*args); r=[x.strip() for x in a.l[n:]]; del a.l[n:]; return r
        def inter(ms,fill):
            per=-(-len(fill)//len(ms))
            for i,m in enumerate(ms):
                a(m)
                for x in fill[i*per:(i+1)*per]: a(x)
        nr=nreads()
        addr_update()
        for e in range(5): dma(g,e)
        dma(g,0); dma(g,1)
        if prof: a("s_memtime s[80:81]")
        a("s_waitcnt vmcnt(7)")
        a("s_barrier")
        if prof: a("s_memtime s[88:89]"); a("s_waitcnt lgkmcnt(0)")
        for x in reads(0,0)+reads(1,1): a(x)
        a.label(name+"_loop")
        a(f"s_waitcnt lgkmcnt({nr})")
        inter(mfmas(0), reads(2,2)+cap(dma,g,2))
        a(f"s_waitcnt lgkmcnt({nr})")
        inter(mfmas(1), reads(3,3)+cap(dma,g,3)+cap(dma,g,4))
        a(f"s_waitcnt lgkmcnt({nr})")
        m2=mfmas(2)
        a(m2[0])
        a(f"s_cmp_lt_u32 s{sIt}, 7")
        a(f"s_cselect_b32 s{SX+2}, s{SX+2}, 0")
        a(f"s_cselect_b32 s{SW+2}, s{SW+2}, 0")
        a(f"s_cselect_b32 s{SE+2}, s{SE+2}, 0")
        addr_update()
        a("s_waitcnt vmcnt(5) lgkmcnt(0)")
        a("s_barrier")
        inter(m2[1:], reads(0,0)+cap(dma,g,0))
        inter(mfmas(3), reads(1,1)+cap(dma,g,1))
        a(f"s_add_u32 s{sIt}, s{sIt}, 1")
        a(f"s_cmp_lt_u32 s{sIt}, 10")
        a(f"s_cbranch_scc1 {name}_loop")
        a("s_nop 7")
        if prof: a("s_memtime s[90:91]")
        a("s_waitcnt lgkmcnt(0)")
        TMP=FX[0]
        if typ=='Q':
            a(f"s_cmp_lt_u32 s{sNB}, 8")
            a(f"s_cselect_b64 vcc, -1, 0")
            a(f"v_cndmask_b32 v{vT}, v27, v{vN}, vcc")
            a(f"v_lshlrev_b32 v{vOm}, 9, v{vH}")
            a(f"v_lshl_add_u32 v{vOm}, v{vT}, 4, v{vOm}")
            a(f"v_mul_lo_u32 v{vOr}, v{vH}, s{sHS}")
            a(f"v_lshl_add_u32 v{vOr}, v{vT}, 3, v{vOr}")
            a(f"s_mul_i32 s{sT}, s{sNB}, {8*QH_BYTES}")
            a(f"s_lshl_b32 s{sT2}, s{sTT}, 10")
            a(f"s_add_u32 s{sOm}, s{sT}, s{sT2}")
            a(f"s_lshl_b32 s{sT2}, s{sTT}, 8")
            a(f"s_add_u32 s{sOr}, s{sT}, s{sT2}")
            a(f"s_add_u32 s{sOr}, s{sOr}, 65536")
            a(f"s_cmp_lt_u32 s{sNB}, 8")
            a(f"s_cbranch_scc1 {name}_isq")
            a(f"s_sub_u32 s{sT}, s{sNB}, 8")
            a(f"s_mul_i32 s{sT}, s{sT}, {8*KV_BYTES}")
            a(f"s_add_u32 s{sT}, s{sT}, s49")
            a(f"s_lshl_b32 s{sT2}, s50, 10")
            a(f"s_add_u32 s{sOm}, s{sT}, s{sT2}")
            a(f"s_lshl_b32 s{sT2}, s50, 8")
            a(f"s_add_u32 s{sOr}, s{sT}, s{sT2}")
            a(f"s_add_u32 s{sOr}, s{sOr}, 8192")
            a.label(name+"_isq")
            a(f"v_mov_b32 v{vT3}, s{sScale}")
            a("s_nop 4")
        else:
            a("s_nop 15")
        tp=TMP
        for i,(k,t) in enumerate(kinds):
            acc=ACC[i]
            if k=='Q':
                for r in range(16): a(f"v_mul_f32 v{acc+r}, v{acc+r}, v{vT3}")
            if k!='g':
                for r in range(8): a(f"v_cvt_pk_bf16_f32 v{tp+r}, v{acc+2*r}, v{acc+2*r+1}")
            if k=='Q' and t<4:
                for hh in range(2):
                    a(f"s_mul_i32 s{sT}, s{sHS}, {t+4*hh}")
                    a(f"s_add_u32 s{sT}, s{sT}, s{sOm}")
                    a(f"buffer_store_dwordx4 {vr(tp+4*hh,4)}, v{vOm}, {sr(SWS,4)}, s{sT} offen")
            elif k=='Q':
                for rg in range(4):
                    a(f"s_mul_i32 s{sT}, s{sHS}, {2*rg}")
                    a(f"s_add_u32 s{sT}, s{sT}, s{sOr}")
                    a(f"buffer_store_dwordx2 {vr(tp+2*rg,2)}, v{vOr}, {sr(SWS,4)}, s{sT} offen")
            elif k in 'Vv':
                if k=='V':
                    a(f"v_add_u32 v{vT}, {32*t}, v{vN}")
                    a(f"v_mul_u32_u24 v{vT2}, 205, v{vT}")
                    a(f"v_lshrrev_b32 v{vT2}, 12, v{vT2}")
                    a(f"v_mul_u32_u24 v{vT4}, 20, v{vT2}")
                    a(f"v_sub_u32 v{vT}, v{vT}, v{vT4}")
                else:
                    a(f"v_mov_b32 v{vT}, v{vN}")
                a(f"v_and_b32 v{vT4}, 0x13, v{vT}")
                a(f"v_and_b32 v{vT5}, 4, v{vT}")
                a(f"v_lshl_or_b32 v{vT4}, v{vT5}, 1, v{vT4}")
                a(f"v_and_b32 v{vT5}, 8, v{vT}")
                a(f"v_lshrrev_b32 v{vT5}, 1, v{vT5}")
                a(f"v_or_b32 v{vT4}, v{vT4}, v{vT5}")
                a(f"v_mul_u32_u24 v{vT5}, 320, v{vH}")
                a(f"v_lshl_add_u32 v{vT4}, v{vT4}, 4, v{vT5}")
                if k=='V':
                    a(f"s_mov_b32 s{sT}, {KV_BYTES}")
                    a(f"v_mul_lo_u32 v{vT2}, v{vT2}, s{sT}")
                    a(f"v_add_u32 v{vT4}, v{vT4}, v{vT2}")
                    a(f"s_sub_u32 s{sT}, s{sNB}, 12")
                    a(f"s_mul_i32 s{sT}, s{sT}, {8*KV_BYTES}")
                else:
                    a(f"s_mov_b32 s{sT}, {32*KV_BYTES}")
                    a(f"v_cmp_gt_u32 vcc, 20, v{vN}")
                    a("s_nop 1")
                    a("s_and_b64 exec, exec, vcc")
                a(f"s_add_u32 s{sT}, s{sT}, s49")
                a(f"s_mul_i32 s{sT2}, s50, 1280")
                a(f"s_add_u32 s{sT}, s{sT}, s{sT2}")
                a(f"s_add_u32 s{sT}, s{sT}, 10240")
                a(f"buffer_store_dwordx4 {vr(tp,4)}, v{vT4}, {sr(SWS,4)}, s{sT} offen")
                a(f"buffer_store_dwordx4 {vr(tp+4,4)}, v{vT4}, {sr(SWS,4)}, s{sT} offen offset:640")
            elif k=='k':
                a(f"v_lshlrev_b32 v{vT}, 9, v{vH}")
                a(f"v_lshl_add_u32 v{vT}, v27, 4, v{vT}")
                a(f"v_lshlrev_b32 v{vT2}, 3, v27")
                a(f"s_add_u32 s{sT}, s49, {32*KV_BYTES}")
                a(f"s_lshl_b32 s{sT2}, s50, 10")
                a(f"s_add_u32 s{sT2}, s{sT2}, s{sT}")
                a(f"buffer_store_dwordx4 {vr(tp,4)}, v{vT}, {sr(SWS,4)}, s{sT2} offen")
                a(f"s_lshl_b32 s{sT2}, s50, 8")
                a(f"s_add_u32 s{sT2}, s{sT2}, s{sT}")
                a(f"s_add_u32 s{sT2}, s{sT2}, 8192")
                a("s_mov_b32 exec_hi, 0")
                a(f"buffer_store_dwordx2 {vr(tp+4,2)}, v{vT2}, {sr(SWS,4)}, s{sT2} offen")
            elif k=='g':
                a(f"v_cvt_pk_bf16_f32 v{vT}, v{acc}, v{acc}")
                a(f"v_lshlrev_b32 v{vT}, 16, v{vT}")
                a(f"v_mul_f32 v{vT}, 0xbfb8aa3b, v{vT}")
                a(f"v_exp_f32 v{vT}, v{vT}")
                a("s_nop 0")
                a(f"v_add_f32 v{vT}, 1.0, v{vT}")
                a(f"v_rcp_f32 v{vT}, v{vT}")
                a("s_nop 0")
                a(f"v_cvt_pk_bf16_f32 v{vT}, v{vT}, v{vT}")
                a(f"v_lshlrev_b32 v{vT}, 16, v{vT}")
                a(f"v_sub_f32 v{vT2}, 1.0, v{vT}")
                a(f"v_cvt_pk_bf16_f32 v{vT2}, v{vT2}, v{vT2}")
                a(f"v_lshlrev_b32 v{vT2}, 16, v{vT2}")
                a(f"v_lshlrev_b32 v{vT4}, 2, v{vN}")
                a(f"s_lshl_b32 s{sT}, s{sTT}, 7")
                a(f"s_add_u32 s{sT}, s{sT}, {WS_G}")
                a(f"s_add_u32 s{sT2}, s{sT}, 8192")
                a("s_mov_b32 exec_hi, 0")
                a(f"buffer_store_dword v{vT}, v{vT4}, {sr(SWS,4)}, s{sT} offen")
                a(f"buffer_store_dword v{vT2}, v{vT4}, {sr(SWS,4)}, s{sT2} offen")
            tp+=8
        if prof: prof_end(a,84,86,72,SWS,sWv,8,0x40000,mids=(76,78,80,88,90))
        a("s_endpgm")
    path("Lproj_Q0",0,'Q',None)
    path("Lproj_V0",0,'V',None)
    path("Lproj_Q1",1,'Q',None)
    path("Lproj_V1",1,'V',None)
    path("Lproj_Q1k",1,'Q','k')
    path("Lproj_Q1v",1,'Q','v')
    path("Lproj_Q1g",1,'Q','g')
    a.label("Lproj_end")
    a("s_endpgm")
    txt=a.text()
    L=txt.split("\n")
    if 'nomf' in var: L=[x for x in L if 'v_mfma' not in x]
    if 'nord' in var: L=[x for x in L if 'ds_read' not in x]
    if 'nodma' in var: L=[x for x in L if ' lds' not in x]
    txt="\n".join(L)
    return txt, NV, 256, 512, 4*STG
```
